```python
import torch

def _softmax(x, axis=-1):
    return torch.softmax(x, dim=axis)
def _gelu(x):
    return torch.nn.functional.gelu(x, approximate="tanh")
def _silu(x):
    return torch.nn.functional.silu(x)
def _sigmoid(x):
    return torch.sigmoid(x)
def _layernorm(x, axis=-1, eps=1e-5):
    m = x.mean(dim=axis, keepdim=True)
    v = x.var(dim=axis, keepdim=True, unbiased=False)
    return (x - m) / torch.sqrt(v + eps)
def _scatter_add(tgt, idx, src, axis=0):
    return tgt.clone().index_add_(axis, idx, src)
def _segment_sum(src, seg, n):
    out = torch.zeros((n,) + src.shape[1:], dtype=src.dtype)
    return out.index_add_(0, seg, src)
def _pad(x, pw):
    flat = tuple(v for pair in reversed(pw) for v in pair)
    return torch.nn.functional.pad(x, flat)

kernel_name = 'interleave_layers__grouped_kv_mqa__dense_activation_silu__prompt'

def setup_inputs():

    _w = (lambda a: (lambda t: t.to(torch.bfloat16) if t.is_floating_point() else t)(torch.as_tensor(a)))
    def _A_setup():
        B, S, D, H = 1, 2048, 512, 32
        Dh = D // H
        return {
            "x": _w((lambda *s: torch.randn(*s, dtype=torch.bfloat16) * 0.05)(B, S, D)),
            "wq": _w((lambda *s: torch.randn(*s, dtype=torch.bfloat16) * 0.05)(D, H * Dh)),
            "wk": _w((lambda *s: torch.randn(*s, dtype=torch.bfloat16) * 0.05)(D, Dh)),
            "wv": _w((lambda *s: torch.randn(*s, dtype=torch.bfloat16) * 0.05)(D, Dh)),
            "wo": _w((lambda *s: torch.randn(*s, dtype=torch.bfloat16) * 0.05)(H * Dh, D)),
        }
    _A_in = _A_setup()

    def _B_setup():
        B, S, D, F = 1, 2048, 512, 1792
        return {
            "x": _w((lambda *s: torch.randn(*s, dtype=torch.bfloat16) * 0.05)(B, S, D)),
            "w1": _w((lambda *s: torch.randn(*s, dtype=torch.bfloat16) * 0.8)(D, F) * (D ** -0.5)),
            "w2": _w((lambda *s: torch.randn(*s, dtype=torch.bfloat16) * 0.8)(F, D) * (F ** -0.5)),
        }
    _B_in = _B_setup()

    return {
        "A_x": _A_in["x"],
        "A_wq": _A_in["wq"],
        "A_wk": _A_in["wk"],
        "A_wv": _A_in["wv"],
        "A_wo": _A_in["wo"],
        "B_x": _B_in["x"],
        "B_w1": _B_in["w1"],
        "B_w2": _B_in["w2"],
    }

def reference(A_x, A_wq, A_wk, A_wv, A_wo, B_x, B_w1, B_w2):
    def _A_ref(x, wq, wk, wv, wo):
        B, S, D = x.shape
        H = 32
        Dh = D // H
        q = (lambda x, *d: x.permute(*d))((x @ wq).reshape(B, S, H, Dh), 0, 2, 1, 3)
        k = x @ wk
        v = x @ wv
        scores = torch.einsum("bhqd,bkd->bhqk", q, k) * (Dh ** -0.5)
        p = _softmax(scores, axis=-1)
        o = torch.einsum("bhqk,bkd->bhqd", p, v)
        return (lambda x, *d: x.permute(*d))(o, 0, 2, 1, 3).reshape(B, S, H * Dh) @ wo

    def _B_ref(x, w1, w2):
        h = torch.einsum("bsd,df->bsf", x, w1)
        h = _silu(h)
        out = torch.einsum("bsf,fd->bsd", h, w2)
        return out

    x = A_x
    x = x + _A_ref(_layernorm(x, axis=-1), A_wq, A_wk, A_wv, A_wo)
    x = x + _B_ref(_layernorm(x, axis=-1), B_w1, B_w2)
    x = x + _A_ref(_layernorm(x, axis=-1), A_wq, A_wk, A_wv, A_wo)
    x = x + _B_ref(_layernorm(x, axis=-1), B_w1, B_w2)
    return x
```

```python
import re

REG_RE = re.compile(r'^(-|\|)?(abs\()?([vas])(\d+|\[(\d+):(\d+)\])\)?\|?$')

def regs_of(op):
    op = op.strip()
    if op == 'vcc': return [('s', 'vcc')]
    if op == 'exec': return [('s', 'exec')]
    if op == 'm0': return [('s', 'm0')]
    m = REG_RE.match(op)
    if not m: return []
    c = m.group(3)
    if m.group(5) is not None:
        return [(c, i) for i in range(int(m.group(5)), int(m.group(6)) + 1)]
    return [(c, int(m.group(4)))]

TRANS = ('v_exp_f32', 'v_log_f32', 'v_rcp_f32', 'v_rsq_f32', 'v_sqrt_f32', 'v_sin_f32', 'v_cos_f32')

def split_ops(s):
    ops = []; cur = ''; depth = 0
    for ch in s:
        if ch in '[(': depth += 1
        if ch in '])': depth -= 1
        if ch == ',' and depth == 0:
            ops.append(cur.strip()); cur = ''
        else: cur += ch
    if cur.strip(): ops.append(cur.strip())
    if ops:
        last = ops[-1].split()
        ops[-1] = last[0]
        mods = last[1:]
    else: mods = []
    return ops, mods

class Ins:
    def __init__(self, text):
        self.text = text
        t = text.split(';')[0].strip()
        sp = t.split(None, 1)
        self.mn = sp[0]
        self.ops, self.mods = split_ops(sp[1]) if len(sp) > 1 else ([], [])
        mn = self.mn
        base = re.sub(r'_(e32|e64|dpp|sdwa)$', '', mn)
        self.base = base
        self.is_mfma = base.startswith('v_mfma') or base.startswith('v_smfmac')
        self.is_valu = base.startswith('v_') and not self.is_mfma
        self.is_trans = base in TRANS
        self.is_dot = base.startswith('v_dot')
        self.is_ds = base.startswith('ds_')
        self.is_vmem = base.startswith('buffer_') or base.startswith('global_')
        self.is_salu = base.startswith('s_')
        self.is_perm = base.startswith('v_permlane')
        self.is_dpp = mn.endswith('_dpp') or any(m.startswith(('row_', 'quad_perm', 'wave_')) for m in self.mods)
        self.is_rdlane = base in ('v_readfirstlane_b32', 'v_readlane_b32')
        R = [regs_of(o) for o in self.ops]
        self.w = []; self.r = []
        self.passes = 0
        self.srcc = []
        self.ab = []
        if self.is_mfma:
            self.passes = 8 if '32x32' in base else 4
            self.w = R[0]
            self.ab = R[1] + R[2]
            if base.startswith('v_smfmac'):
                self.srcc = R[0]; self.ab = self.ab + R[3]
            else:
                self.srcc = R[3]
            self.r = self.ab + self.srcc
        elif self.is_valu:
            if self.is_perm:
                self.w = R[0] + R[1]; self.r = R[0] + R[1]
            else:
                self.w = R[0]
                rest = R[1:]
                if base in ('v_add_co_u32', 'v_sub_co_u32', 'v_addc_co_u32', 'v_subb_co_u32', 'v_mad_u64_u32'):
                    self.w = R[0] + R[1]; rest = R[2:]
                for x in rest: self.r += x
                if base in ('v_fmac_f32', 'v_dot2c_f32_bf16', 'v_writelane_b32', 'v_pk_fmac_f16') or mn.endswith('_sdwa') or self.is_dpp:
                    self.r += R[0]
        elif self.is_ds:
            if base.startswith(('ds_read', 'ds_bpermute', 'ds_permute', 'ds_swizzle')):
                self.w = R[0]
                for x in R[1:]: self.r += x
            else:
                for x in R: self.r += x
        elif self.is_vmem:
            isload = 'load' in base
            lds = 'lds' in self.mods or '_lds_' in base
            if isload and not lds:
                self.w = R[0]
                for x in R[1:]: self.r += x
            else:
                for x in R: self.r += x
            self.lds = lds
            self.wide_store = ('store' in base) and base.endswith(('x3', 'x4'))
            if self.wide_store:
                self.sdata = R[0] if base.startswith('buffer_') else R[1]
        elif self.is_salu:
            if base.startswith(('s_cmp', 's_cbranch', 's_branch', 's_waitcnt', 's_nop', 's_barrier', 's_endpgm', 's_setprio', 's_sleep', 's_setpc', 's_bitcmp')):
                for x in R: self.r += x
            elif R:
                self.w = R[0]
                for x in R[1:]: self.r += x

class Hazard:
    def __init__(self):
        self.pos = 0
        self.valu_w = {}; self.trans_w = {}; self.dot_w = {}; self.mfma_w = {}; self.mfma_c = {}
        self.st_r = {}; self.valu_sw = {}; self.m0_w = -100
    def need(self, I):
        req = 0
        def upd(p, n, why=None):
            nonlocal req
            d = p + n + 1 - self.pos
            if d > req: req = d
        isv = lambda r: r[0] in 'va'
        if I.is_mfma:
            for r in I.r:
                if r in self.valu_w: upd(self.valu_w[r], 2)
                if r in self.dot_w: upd(self.dot_w[r][0], 3)
            for r in I.ab:
                if r in self.mfma_w:
                    p, ps, d = self.mfma_w[r]; upd(p, 12 if ps == 8 else 8)
            for r in I.srcc:
                if r in self.mfma_w:
                    p, ps, d = self.mfma_w[r]
                    if d == tuple(I.srcc) and ps == I.passes: pass
                    else: upd(p, 10 if ps == 8 else 6)
            for r in I.w:
                if r in self.mfma_w:
                    p, ps, d = self.mfma_w[r]
                    if d != tuple(I.w): upd(p, 10 if ps == 8 else 6)
            if ('s', 'exec') in self.valu_sw: upd(self.valu_sw[('s', 'exec')], 4)
        else:
            touched = [r for r in (I.r + I.w) if isv(r)]
            if I.is_valu or I.is_ds or I.is_vmem:
                for r in touched:
                    if r in self.mfma_w:
                        p, ps, d = self.mfma_w[r]; upd(p, 12 if ps == 8 else 8)
            if I.is_valu:
                for r in I.w:
                    if r in self.mfma_c:
                        p, ps = self.mfma_c[r]; upd(p, 7 if ps == 8 else 3)
                    if r in self.st_r: upd(self.st_r[r], 2)
                for r in I.r:
                    if r in self.trans_w and not I.is_trans: upd(self.trans_w[r], 1)
                    if r in self.valu_w and (I.is_perm or I.is_dpp): upd(self.valu_w[r], 2)
                    if r in self.valu_w and I.is_rdlane and isv(r): upd(self.valu_w[r], 1)
                    if r in self.valu_sw: upd(self.valu_sw[r], 4 if I.base in ('v_readlane_b32', 'v_writelane_b32') else 2)
                for r in touched:
                    if r in self.dot_w:
                        p, op = self.dot_w[r]
                        if I.is_dot and I.base == op and (r not in regs_of(I.ops[1]) + regs_of(I.ops[2])): pass
                        else: upd(p, 3)
                if I.base == 'v_cndmask_b32' and len(I.ops) == 4 and I.ops[3] == 'vcc' and ('s', 'vcc') in self.valu_sw:
                    upd(self.valu_sw[('s', 'vcc')], 2)
            if I.is_ds or I.is_vmem:
                for r in touched:
                    if r in self.dot_w: upd(self.dot_w[r][0], 3)
                    if r in self.trans_w: upd(self.trans_w[r], 1)
                for r in I.w:
                    if r in self.st_r: upd(self.st_r[r], 1)
            if I.is_vmem:
                for r in I.r:
                    if r in self.valu_sw: upd(self.valu_sw[r], 5)
                if getattr(I, 'lds', False): upd(self.m0_w, 1)
            if I.is_salu:
                for r in I.r:
                    if r in self.valu_sw: upd(self.valu_sw[r], 1)
        return req
    def commit(self, I):
        p = self.pos
        if I.mn == 's_nop':
            self.pos += int(I.ops[0], 0) + 1; return
        if I.is_mfma:
            for r in I.w:
                self.mfma_w[r] = (p, I.passes, tuple(I.w))
                self.valu_w.pop(r, None); self.trans_w.pop(r, None); self.dot_w.pop(r, None)
            for r in I.srcc: self.mfma_c[r] = (p, I.passes)
        elif I.is_valu:
            for r in I.w:
                if r[0] == 's': self.valu_sw[r] = p
                else:
                    self.valu_w[r] = p
                    if I.is_trans: self.trans_w[r] = p
                    else: self.trans_w.pop(r, None)
                    if I.is_dot: self.dot_w[r] = (p, I.base)
                    else: self.dot_w.pop(r, None)
                    self.mfma_w.pop(r, None)
            if I.base.startswith('v_cmpx'): self.valu_sw[('s', 'exec')] = p
        elif I.is_vmem:
            if getattr(I, 'wide_store', False):
                for r in I.sdata: self.st_r[r] = p
        elif I.is_salu:
            if ('s', 'm0') in I.w: self.m0_w = p
            for r in I.w: self.valu_sw.pop(r, None)
        self.pos += 1

class Emitter:
    def __init__(self):
        self.lines = []
        self.hz = Hazard()
        self.nlabel = 0
        self.nops_inserted = 0
        self.strict = False
    def raw(self, s):
        self.lines.append(s)
    def c(self, s):
        self.lines.append('    ; ' + s)
    def label(self, name):
        self.lines.append(name + ':')
    def newlabel(self, p='L'):
        self.nlabel += 1
        return f'{p}_{self.nlabel}'
    def __call__(self, text):
        for t in text.split('\n'):
            t = t.strip()
            if not t: continue
            if t.startswith(';'):
                self.lines.append('    ' + t); continue
            if t.endswith(':') or t.startswith('.'):
                self.lines.append(t); continue
            I = Ins(t)
            n = self.hz.need(I)
            if n > 0:
                if self.strict: raise RuntimeError(f'hazard: need {n} before: {t}')
                self.nops_inserted += 1
                while n > 0:
                    k = min(n, 16)
                    nop = Ins(f's_nop {k-1}')
                    self.lines.append(f'    s_nop {k-1}')
                    self.hz.commit(nop); n -= k
            self.lines.append('    ' + t)
            self.hz.commit(I)
    def settle(self, n=16):
        self(f's_nop {n-1}')
    def text(self):
        return '\n'.join(self.lines) + '\n'

def v(a, n=1): return f'v{a}' if n == 1 else f'v[{a}:{a+n-1}]'
def a(x, n=1): return f'a{x}' if n == 1 else f'a[{x}:{x+n-1}]'
def s(x, n=1): return f's{x}' if n == 1 else f's[{x}:{x+n-1}]'
```

```python
import sys
from asmlib import *

NAME = 'interleave_layers__grouped_kv_mqa__dense_activation_silu__prompt'
STAMP = '--stamp' in sys.argv
FORCE_SLOW = '--slow' in sys.argv
FORCE_RETRY = '--retry' in sys.argv

PFLAG = 0x1000; DFLAG = 0x2000; TFLAG = 0x4000
WQP = 0x10000; WKP = 0x94000; WVP = 0x98400; WOP = 0xA0000; W1P = 0x120000; W2P = 0x2F0000
ACT = 0x500000; LS = 0x1000000
XC = 0; XCS = 0x200000; OO = 0x300000; X1 = 0x500000; X1S = 0x700000; KV = 0x780000; HH = 0x800000
STAMPS = 0x4000000
L_STAT = 128*1024; L_ONES = 136*1024; L_RED = 144*1024
SWS = 4; SRC = 8
sTEAM, sJ, sW, sEP, sFAST, sL, sS, sKH, sTO = 12, 13, 14, 15, 16, 17, 18, 19, 20
sPTR = 32; sOUT = 48; sKHM = 50; sONE = 52; sMYF = 53; sTFL = 54; sACT = 55; sLINK = 56; sRETRY = 58
sFB = 59
sEX = 60; sST = 62; sSTI = 64; sT64 = 65
sMT = 66
vL16, vLANE, vFLG = 0, 1, 2
vXR = 8
vR0, vR1, vRK, vT = 24, 25, 26, 27
vM0, vM1 = 28, 32
vXF = 36; NXF = 6
vXS, vXK, vEPO, vSTMP = 60, 61, 62, 63
vACC = 64
vSW = 4
vRED_W, vRED_R = 5, 6
vW = 128

k = Emitter()

def stamp(i):
    if not STAMP: return
    k(f's_memrealtime {s(sST,2)}')
    k(f's_add_u32 {s(sSTI+3)}, {s(sSTI)}, {i}')
    k('s_waitcnt lgkmcnt(0)')
    k(f'v_writelane_b32 {v(vSTMP)}, {s(sST)}, {s(sSTI+3)}')

def load_frags(dsts, sreg, flags=''):
    for i, d in enumerate(dsts):
        if i and i % 4 == 0:
            k(f's_add_u32 {s(sreg)}, {s(sreg)}, 4096')
        k(f'buffer_load_dwordx4 {d}, {v(vL16)}, {s(SWS,4)}, {s(sreg)} offen offset:{(i%4)*1024} {flags}')

def dma(n, slds, sglb):
    for i in range(n):
        if i % 4 == 0:
            if i:
                k(f's_add_u32 {s(slds)}, {s(slds)}, 4096')
                k(f's_add_u32 {s(sglb)}, {s(sglb)}, 4096')
            k(f's_mov_b32 m0, {s(slds)}')
        k(f'buffer_load_dwordx4 {v(vL16)}, {s(SWS,4)}, {s(sglb)} offen offset:{(i%4)*1024} sc1 lds')

def spin_guard(lbl_loop):
    k(f's_sub_u32 {s(sTO)}, {s(sTO)}, 1')
    k(f's_cmp_eq_u32 {s(sTO)}, 0')
    k('s_cbranch_scc1 L_exit')
    k(f's_branch {lbl_loop}')

def poll_team(ph):
    lp = k.newlabel('L_poll'); ld = k.newlabel('L_pok')
    k(f's_add_u32 s21, {s(sFB)}, {s(sTFL)}')
    k(f's_add_u32 s21, s21, {ph*4096}')
    k.label(lp)
    k(f'buffer_load_dword v3, {v(vFLG)}, {s(SWS,4)}, s21 offen sc1')
    k('s_waitcnt vmcnt(0)')
    k(f'v_cmp_ne_u32 vcc, {s(sEP)}, v3')
    k(f's_cbranch_vccz {ld}')
    spin_guard(lp)
    k.label(ld)

def two_ways(fn):
    l1 = k.newlabel('L_slow'); l2 = k.newlabel('L_join')
    k(f's_cmp_eq_u32 {s(sFAST)}, 0')
    k(f's_cbranch_scc1 {l1}')
    fn('')
    k(f's_branch {l2}')
    k.label(l1)
    fn('sc1')
    k.label(l2)

def flag_store(sreg, fl):
    k('s_waitcnt vmcnt(0)')
    k(f's_mov_b64 {s(sEX,2)}, exec')
    k('s_mov_b64 exec, 1')
    k(f'buffer_store_dword {v(vEPO)}, off, {s(SWS,4)}, {s(sreg)} {fl}')
    k(f's_mov_b64 exec, {s(sEX,2)}')

def team_flag_addr(sreg, ph):
    k(f's_add_u32 {s(sreg)}, {s(sFB)}, {s(sMYF)}')
    k(f's_add_u32 {s(sreg)}, {s(sreg)}, {ph*4096}')

def pack_tile(src, dst):
    for i in range(8):
        k(f'v_cvt_pk_bf16_f32 {v(dst+i)}, {v(src+2*i)}, {v(src+2*i+1)}')

def swap_nat(P):
    for x, y in ((0,2),(1,3),(4,6),(5,7)):
        k(f'v_permlane32_swap_b32 {v(P+x)}, {v(P+y)}')

def publish_x(dataoff, statoff, ph):
    P = vACC
    pack_tile(vXR, P)
    for i in range(8):
        k(f'v_dot2_f32_bf16 {v(P+8)}, {v(P+i)}, {s(sONE)}, {"0" if i==0 else v(P+8)}')
        k(f'v_dot2_f32_bf16 {v(P+9)}, {v(P+i)}, {v(P+i)}, {"0" if i==0 else v(P+9)}')
    swap_nat(P)
    k(f'v_permlane32_swap_b32 {v(P+8)}, {v(P+9)}')
    k(f's_add_u32 s22, {s(sACT)}, {s(sT64)}')
    k(f's_add_u32 s22, s22, {s(sMT)}')
    k(f's_add_u32 s22, s22, {dataoff}')
    k(f's_lshr_b32 s23, {s(sT64)}, 3')
    k(f's_add_u32 s23, s23, {s(sACT)}')
    k(f's_lshl_b32 s24, {s(sJ)}, 10')
    k(f's_add_u32 s23, s23, s24')
    k(f's_lshl_b32 s24, {s(sKH)}, 9')
    k(f's_add_u32 s23, s23, s24')
    k(f's_lshl_b32 s24, {s(sS)}, 3')
    k(f's_add_u32 s23, s23, s24')
    k(f's_add_u32 s23, s23, {statoff}')
    team_flag_addr(24, ph)
    k(f'v_add_f32 {v(P+8)}, {v(P+8)}, {v(P+9)}')
    def f(fl):
        k(f'buffer_store_dwordx4 {v(P,4)}, {v(vL16)}, {s(SWS,4)}, s22 offen {fl}')
        k(f'buffer_store_dwordx4 {v(P+4,4)}, {v(vL16)}, {s(SWS,4)}, s22 offen offset:2048 {fl}')
        k(f'buffer_store_dword {v(P+8)}, {v(vSW)}, {s(SWS,4)}, s23 offen {fl}')
        flag_store(24, fl)
    two_ways(f)

def dma_image(dataoff, statoff=None):
    k(f's_lshl_b32 s22, {s(sW)}, 14')
    k(f's_add_u32 s23, {s(sACT)}, {s(sT64)}')
    k(f's_add_u32 s23, s23, s22')
    k(f's_add_u32 s23, s23, {dataoff}')
    dma(16, 22, 23)
    if statoff is not None:
        k(f's_lshl_b32 s22, {s(sW)}, 11')
        k(f's_lshr_b32 s23, {s(sT64)}, 3')
        k(f's_add_u32 s23, s23, {s(sACT)}')
        k(f's_add_u32 s23, s23, s22')
        k(f's_add_u32 s23, s23, {statoff}')
        k(f's_add_u32 s22, s22, {L_STAT}')
        dma(2, 22, 23)

def compute_stats(T):
    k(f'v_add_u32 v3, {L_STAT}, {v(vL16)}')
    for j in range(8):
        k(f'ds_read_b128 {v(T+4*j,4)}, v3 offset:{j*1024}')
    k('s_waitcnt lgkmcnt(0)')
    n = 16
    while n > 1:
        n //= 2
        for i in range(n):
            k(f'v_pk_add_f32 {v(T+2*i,2)}, {v(T+4*i,2)}, {v(T+4*i+2,2)}')
    k(f'v_mul_f32 {v(T)}, {1/512}, {v(T)}'.replace(str(1/512), '0x3b000000'))
    k(f'v_mul_f32 {v(T+1)}, 0x3b000000, {v(T+1)}')
    k(f'v_fma_f32 {v(T+1)}, -{v(T)}, {v(T)}, {v(T+1)}')
    k(f'v_max_f32 {v(T+1)}, 0, {v(T+1)}')
    k(f'v_add_f32 {v(T+1)}, 0x3727c5ac, {v(T+1)}')
    k(f'v_rsq_f32 {v(vR1)}, {v(T+1)}')
    k(f'v_cvt_pk_bf16_f32 {v(vM1)}, -{v(T)}, -{v(T)}')

def distribute_stats():
    k(f'v_mov_b32 {v(vR0)}, {v(vR1)}')
    k(f'v_mov_b32 {v(vM0)}, {v(vM1)}')
    k(f'v_permlane32_swap_b32 {v(vR0)}, {v(vR1)}')
    k(f'v_permlane32_swap_b32 {v(vM0)}, {v(vM1)}')
    k(f'v_cndmask_b32 {v(vRK)}, {v(vR0)}, {v(vR1)}, {s(sKHM,2)}')

def gemm_seq(steps, pre=None, depth=4, between=None):
    rd = [i for i, st in enumerate(steps) if st[2] is not None]
    slot = {}
    issued = 0
    def issue():
        nonlocal issued
        i = rd[issued]
        st = steps[i]
        slot[i] = vXF + 4*(issued % NXF)
        k(f'ds_read_b128 {v(slot[i],4)}, {v(st[2])} offset:{st[3]}')
        issued += 1
    for _ in range(min(depth, len(rd))): issue()
    done = 0
    extra = 0
    for i, st in enumerate(steps):
        acc, wf, ad, imm, cin = st
        if ad is not None:
            done += 1
            k(f's_waitcnt lgkmcnt({min(15, issued-done)})')
            xo = v(slot[i],4)
        else:
            xo = v(imm,4)
        k(f'v_mfma_f32_32x32x16_bf16 {v(acc,16)}, {wf}, {xo}, {cin if cin is not None else v(acc,16)}')
        if issued < len(rd): issue()

def red_exchange(send, T):
    for i in range(4):
        k(f'ds_write_b128 {v(vRED_W)}, {v(send+4*i,4)} offset:{i*1024}')
    k('s_waitcnt lgkmcnt(0)')
    k('s_barrier')
    for i in range(4):
        k(f'ds_read_b128 {v(T+4*i,4)}, {v(vRED_R)} offset:{i*1024}')
    k('s_waitcnt lgkmcnt(0)')

k.raw(f'''; single persistent kernel: 256 workgroups (one per CU), 4 waves each.
; @launch grid=(256,1,1) block=(256,1,1) lds=163840
.amdgcn_target "amdgcn-amd-amdhsa--gfx950"
.text
.globl {NAME}_kernel
.p2align 8
.type {NAME}_kernel,@function
{NAME}_kernel:''')
k('s_cmp_ge_u32 s2, 256')
k('s_cbranch_scc1 L_exit')
k(f's_load_dwordx16 {s(sPTR,16)}, s[0:1], 0')
k(f's_load_dwordx2 {s(sOUT,2)}, s[0:1], 64')
k(f's_load_dwordx2 {s(SWS,2)}, s[0:1], 80')
k('v_lshrrev_b32 v3, 6, v0')
k(f'v_and_b32 {v(vLANE)}, 63, v0')
k(f'v_readfirstlane_b32 {s(sW)}, v3')
k(f'v_lshlrev_b32 {v(vL16)}, 4, {v(vLANE)}')
k(f's_mov_b32 {s(SWS+2)}, 0x10000000')
k(f's_mov_b32 {s(SWS+3)}, 0x20000')
k(f's_mov_b32 {s(SRC+3)}, 0x20000')
k(f's_mov_b32 {s(sTO)}, 0x40000')
k(f's_mov_b32 {s(sONE)}, 0x3f803f80')
k(f's_mov_b32 {s(sSTI)}, 0')
k(f'v_mov_b32 {v(vSTMP)}, 0')
k('s_and_b32 s21, s2, 7')
k('s_lshr_b32 s22, s2, 3')
k(f's_and_b32 {s(sJ)}, s22, 7')
k('s_lshr_b32 s22, s22, 3')
k('s_lshl_b32 s21, s21, 2')
k(f's_add_u32 {s(sTEAM)}, s21, s22')
k(f's_and_b32 {s(sS)}, {s(sW)}, 1')
k(f's_lshr_b32 {s(sKH)}, {s(sW)}, 1')
k(f's_sub_u32 {s(sKHM)}, 0, {s(sKH)}')
k(f's_mov_b32 {s(sKHM+1)}, {s(sKHM)}')
k(f's_lshl_b32 {s(sTFL)}, {s(sTEAM)}, 7')
k(f's_lshl_b32 s21, {s(sJ)}, 4')
k(f's_lshl_b32 s22, {s(sW)}, 2')
k(f's_add_u32 {s(sMYF)}, {s(sTFL)}, s21')
k(f's_add_u32 {s(sMYF)}, {s(sMYF)}, s22')
k(f's_lshl_b32 {s(sT64)}, {s(sTEAM)}, 16')
k(f's_lshl_b32 s21, {s(sJ)}, 13')
k(f's_lshl_b32 s22, {s(sS)}, 12')
k(f's_add_u32 {s(sMT)}, s21, s22')
k(f's_lshl_b32 s22, {s(sKH)}, 10')
k(f's_add_u32 {s(sMT)}, {s(sMT)}, s22')
k(f'v_and_b32 v3, 31, {v(vLANE)}')
k(f'v_lshrrev_b32 v7, 5, {v(vLANE)}')
k(f'v_lshlrev_b32 {v(vFLG)}, 2, v3')
k(f'v_lshlrev_b32 {v(vSW)}, 4, v3')
k(f'v_lshl_add_u32 {v(vSW)}, v7, 2, {v(vSW)}')
k(f's_lshl_b32 s21, {s(sKH)}, 15')
k(f's_lshl_b32 s22, {s(sKH)}, 10')
k(f's_add_u32 s23, s21, s22')
k(f'v_add_u32 {v(vXK)}, s23, {v(vL16)}')
k(f's_sub_u32 s23, s21, s22')
k(f's_add_u32 s23, s23, 1024')
k(f'v_add_u32 {v(vXS)}, s23, {v(vL16)}')
k(f's_lshl_b32 s21, {s(sW)}, 12')
k(f's_add_u32 s22, s21, {L_RED}')
k(f'v_add_u32 {v(vRED_W)}, s22, {v(vL16)}')
k(f's_xor_b32 s21, s21, 8192')
k(f's_add_u32 s22, s21, {L_RED}')
k(f'v_add_u32 {v(vRED_R)}, s22, {v(vL16)}')
k('s_waitcnt lgkmcnt(0)')
stamp(0)
k(f's_load_dword {s(sEP)}, {s(SWS,2)}, 0')
k(f's_mov_b32 {s(SRC)}, {s(sPTR)}')
k(f's_mov_b32 {s(SRC+1)}, {s(sPTR+1)}')
k(f's_mov_b32 {s(SRC+2)}, {2048*1024}')
k(f'v_lshlrev_b32 v64, 10, v3')
k(f'v_lshl_add_u32 v64, v7, 3, v64')
k(f's_lshl_b32 s21, {s(sKH)}, 15')
k(f's_add_u32 s21, s21, {s(sT64)}')
k(f's_lshl_b32 s22, {s(sJ)}, 7')
k(f's_add_u32 s21, s21, s22')
k(f's_lshl_b32 s22, {s(sS)}, 6')
k(f's_add_u32 s21, s21, s22')
for q in range(4):
    k(f'buffer_load_dwordx2 {v(66+2*q,2)}, v64, {s(SRC,4)}, s21 offen offset:{q*16}')
k(f's_lshl_b32 s21, {s(sW)}, 8')
k('s_add_u32 s21, s21, s2')
k('s_cmp_ge_u32 s21, 580')
k('s_cbranch_scc1 L_pk_done')
k('s_cmp_ge_u32 s21, 576')
k('s_cbranch_scc1 L_pk_kv')
k('s_cmp_ge_u32 s21, 352')
k('s_cbranch_scc1 L_pk_w2')
k('s_cmp_ge_u32 s21, 288')
k('s_cbranch_scc1 L_pk_wo')
k('s_cmp_ge_u32 s21, 224')
k('s_cbranch_scc1 L_pk_wq')
def pk_setup(ptr, nbytes, stride, native, jobbase, dstbase, tilebytes, cs, w2=False):
    k(f's_mov_b32 {s(SRC)}, {s(sPTR+2*ptr)}')
    k(f's_mov_b32 {s(SRC+1)}, {s(sPTR+2*ptr+1)}')
    k(f's_mov_b32 {s(SRC+2)}, {nbytes}')
    k(f's_sub_u32 s21, s21, {jobbase}')
    if w2:
        k('s_and_b32 s28, s21, 15'); k('s_lshr_b32 s29, s21, 4')
    else:
        k('s_lshr_b32 s28, s21, 2'); k('s_and_b32 s29, s21, 3')
    k(f's_mov_b32 s22, {stride}')
    k(f's_mov_b32 s23, {(8 if native else 4)*stride}')
    k(f's_mov_b32 s24, {16*stride}')
    k(f's_mul_i32 s25, s29, {128*stride}')
    k('s_lshl_b32 s30, s28, 6')
    k('s_add_u32 s25, s25, s30')
    k(f's_mul_i32 s26, s28, {tilebytes}')
    k(f's_add_u32 s26, s26, {dstbase}')
    if cs:
        k('s_lshl_b32 s30, s29, 2')
        k('s_add_u32 s27, s26, s30')
        k(f's_add_u32 s27, s27, {32*1024}')
    else:
        k('s_mov_b32 s27, -1')
    k('s_lshl_b32 s30, s29, 13')
    k('s_add_u32 s26, s26, s30')
    k(f's_mov_b32 s30, {(4 if native else 8)*stride}')
    k('v_mul_lo_u32 v65, s30, v7')
    k('v_lshl_add_u32 v65, v3, 1, v65')
    k('s_mov_b32 s31, 0')
    k('s_branch L_pk_go')
pk_setup(6, 512*3584, 3584, False, 0, W1P, 33*1024, True)
k.label('L_pk_wq'); pk_setup(1, 512*1024, 1024, False, 224, WQP, 33*1024, True)
k.label('L_pk_wo'); pk_setup(4, 512*1024, 1024, True, 288, WOP, 32*1024, False)
k.label('L_pk_w2'); pk_setup(7, 1792*1024, 1024, True, 352, W2P, 112*1024, False, w2=True)
k.label('L_pk_kv')
k('s_sub_u32 s21, s21, 576')
k('s_lshr_b32 s28, s21, 1')
k('s_and_b32 s29, s21, 1')
k('s_cmp_eq_u32 s28, 0')
k(f's_cselect_b32 {s(SRC)}, {s(sPTR+4)}, {s(sPTR+6)}')
k(f's_cselect_b32 {s(SRC+1)}, {s(sPTR+5)}, {s(sPTR+7)}')
k(f's_mov_b32 {s(SRC+2)}, {512*32}')
k('s_mov_b32 s22, 32'); k('s_mov_b32 s23, 128'); k('s_mov_b32 s24, 1024')
k('s_lshl_b32 s25, s29, 13')
k(f's_mul_i32 s26, s28, {17*1024}')
k(f's_add_u32 s26, s26, {WKP}')
k('s_lshl_b32 s30, s29, 2')
k('s_add_u32 s27, s26, s30')
k(f's_add_u32 s27, s27, {16*1024}')
k('s_lshl_b32 s30, s29, 13')
k('s_add_u32 s26, s26, s30')
k(f'v_and_b32 v65, 15, {v(vLANE)}')
k('v_lshlrev_b32 v65, 1, v65')
k(f'v_lshrrev_b32 v74, 4, {v(vLANE)}')
k('v_lshl_add_u32 v65, v74, 8, v65')
k('s_mov_b32 s31, 1')
k.label('L_pk_go')
RAW = 128
for f in range(8):
    k('s_mov_b32 s28, s25')
    k('s_add_u32 s29, s25, s23')
    for j in range(4):
        k(f'buffer_load_ushort {v(RAW+8*f+j)}, v65, {s(SRC,4)}, s28 offen')
        k(f'buffer_load_ushort {v(RAW+8*f+4+j)}, v65, {s(SRC,4)}, s29 offen')
        if j < 3:
            k('s_add_u32 s28, s28, s22'); k('s_add_u32 s29, s29, s22')
    k('s_add_u32 s25, s25, s24')
    if f == 5: k('s_waitcnt vmcnt(32)')
PK = 192
for f in range(8):
    k(f's_waitcnt vmcnt({min(8*(7-f)+f, 63)})')
    for i in range(4):
        k(f'v_lshl_or_b32 {v(PK+4*f+i)}, {v(RAW+8*f+2*i+1)}, 16, {v(RAW+8*f+2*i)}')
    if f == 4: k('s_add_u32 s26, s26, 4096')
    k(f'buffer_store_dwordx4 {v(PK+4*f,4)}, {v(vL16)}, {s(SWS,4)}, s26 offen offset:{(f%4)*1024} sc1')
k('s_cmp_eq_u32 s27, -1')
k('s_cbranch_scc1 L_pk_done')
for i in range(32):
    k(f'v_dot2_f32_bf16 v74, {v(PK+i)}, {s(sONE)}, {"0" if i==0 else "v74"}')
k('v_cvt_pk_bf16_f32 v75, v74, v74')
k('v_lshlrev_b32 v75, 16, v75')
k('v_sub_f32 v75, v74, v75')
k('v_cvt_pk_bf16_f32 v74, v74, v75')
k(f'buffer_store_dword v74, {v(vL16)}, {s(SWS,4)}, s27 offen sc1')
k('s_cmp_eq_u32 s31, 0')
k('s_cbranch_scc1 L_pk_done')
k('v_mov_b32 v75, 0')
k(f'buffer_store_dword v75, {v(vL16)}, {s(SWS,4)}, s27 offen offset:8 sc1')
k.label('L_pk_done')
k('s_waitcnt vmcnt(0) lgkmcnt(0)')
k(f's_and_b32 {s(sEP)}, {s(sEP)}, -8')
k(f's_add_u32 {s(sEP)}, {s(sEP)}, 8')
k(f'v_mov_b32 {v(vEPO)}, {s(sEP)}')
for q in range(4):
    for i in range(2):
        k(f'v_lshlrev_b32 {v(vXR+4*q+2*i)}, 16, {v(66+2*q+i)}')
        k(f'v_and_b32 {v(vXR+4*q+2*i+1)}, 0xffff0000, {v(66+2*q+i)}')
k('s_barrier')
k('s_getreg_b32 s25, hwreg(HW_REG_XCC_ID)')
k('s_and_b32 s25, s25, 7')
k(f's_or_b32 s25, s25, {s(sEP)}')
k(f's_cmp_lg_u32 {s(sW)}, 0')
k('s_cbranch_scc1 L_pflag_done')
k(f's_lshl_b32 s21, {s(sTEAM)}, 5')
k(f's_lshl_b32 s22, {s(sJ)}, 2')
k('s_add_u32 s21, s21, s22')
k(f's_add_u32 s21, s21, {PFLAG}')
k('v_mov_b32 v64, s25')
k(f's_mov_b64 {s(sEX,2)}, exec')
k('s_mov_b64 exec, 1')
k(f'buffer_store_dword v64, off, {s(SWS,4)}, s21 sc1')
k(f's_mov_b64 exec, {s(sEX,2)}')
k.label('L_pflag_done')
stamp(1)
k(f's_mov_b32 s21, {PFLAG}')
k.label('L_ppoll')
k(f'buffer_load_dwordx4 v[64:67], {v(vL16)}, {s(SWS,4)}, s21 offen sc1')
k('s_waitcnt vmcnt(0)')
for i in range(4):
    k(f'v_xor_b32 {v(68+i)}, {s(sEP)}, {v(64+i)}')
k('v_or3_b32 v72, v68, v69, v70')
k('v_or_b32 v72, v72, v71')
k('v_cmp_lt_u32 vcc, 7, v72')
k('s_cbranch_vccz L_ppoll_ok')
spin_guard('L_ppoll')
k.label('L_ppoll_ok')
for i in range(4):
    k(f'v_xor_b32 {v(68+i)}, s25, {v(64+i)}')
k('v_or3_b32 v72, v68, v69, v70')
k('v_or_b32 v72, v72, v71')
k('v_cmp_ne_u32 vcc, 0, v72')
k(f's_lshl_b32 s21, {s(sTEAM)}, 1')
k('s_lshr_b64 s[22:23], vcc, s21')
k('s_and_b32 s22, s22, 3')
k('s_cmp_eq_u32 s22, 0')
k(f's_cselect_b32 {s(sFAST)}, 1, 0')
if FORCE_SLOW: k(f's_mov_b32 {s(sFAST)}, 0')
k(f's_or_b32 s21, s2, {s(sW)}')
k('s_cmp_lg_u32 s21, 0')
k('s_cbranch_scc1 L_ep_done')
k(f's_mov_b64 {s(sEX,2)}, exec')
k('s_mov_b64 exec, 1')
k(f'buffer_store_dword {v(vEPO)}, off, {s(SWS,4)}, 0 sc1')
k(f's_mov_b64 exec, {s(sEX,2)}')
k.label('L_ep_done')
k(f's_mov_b32 {s(sL)}, 0')
k(f's_mov_b32 {s(sACT)}, {ACT}')
k(f's_mov_b32 {s(sFB)}, {TFLAG}')
stamp(2)
if STAMP: k(f's_mov_b32 {s(sSTI)}, 3')
k.settle()
k.label('L_layer')
publish_x(XC, XCS, 0)
stamp(0)
k(f's_lshl_b32 s25, {s(sJ)}, 1')
k(f's_add_u32 s25, s25, {s(sS)}')
k(f's_mul_i32 s25, s25, {33*1024}')
k(f's_add_u32 s25, s25, {WQP}')
k(f's_add_u32 s26, s25, {32*1024}')
k(f's_lshl_b32 s27, {s(sKH)}, 14')
k('s_add_u32 s25, s25, s27')
load_frags([v(vW+4*i,4) for i in range(16)], 25)
load_frags([v(vW+64,4)], 26)
k(f's_cmp_lg_u32 {s(sW)}, 0')
k('s_cbranch_scc1 L_nokvw')
k(f's_and_b32 s25, {s(sJ)}, 1')
k(f's_mul_i32 s25, s25, {17*1024}')
k(f's_add_u32 s25, s25, {WKP}')
load_frags([a(4*i,4) for i in range(17)], 25)
k.label('L_nokvw')
poll_team(0)
stamp(1)
dma_image(XC, XCS)
k(f'v_mov_b32 v64, {s(sONE)}'); k(f'v_mov_b32 v65, {s(sONE)}'); k(f'v_mov_b32 v66, {s(sONE)}'); k(f'v_mov_b32 v67, {s(sONE)}')
k(f's_lshl_b32 s21, {s(sW)}, 11')
k(f's_add_u32 s21, s21, {L_ONES}')
k(f'v_add_u32 v3, s21, {v(vL16)}')
k('ds_write_b128 v3, v[64:67]')
k('ds_write_b128 v3, v[64:67] offset:1024')
k('s_waitcnt vmcnt(0) lgkmcnt(0)')
k('s_barrier')
stamp(2)
compute_stats(200)
k(f's_cmp_lg_u32 {s(sW)}, 0')
k('s_cbranch_scc1 L_nokv')
k(f's_lshr_b32 s21, {s(sJ)}, 1')
k(f'v_and_b32 v64, 15, {v(vLANE)}')
k(f'v_lshrrev_b32 v65, 4, {v(vLANE)}')
k('v_lshrrev_b32 v66, 1, v65')
k('v_and_b32 v67, 1, v65')
k('s_lshl_b32 s22, s21, 6')
k('v_lshl_add_u32 v68, v64, 2, s22')
k('v_lshl_add_u32 v69, v65, 4, s22')
k(f'ds_bpermute_b32 v72, v68, {v(vM1)}')
k(f'ds_bpermute_b32 v76, v68, {v(vR1)}')
for r in range(4):
    k(f'ds_bpermute_b32 {v(80+r)}, v69, {v(vR1)} offset:{4*r}')
k('s_lshr_b32 s22, s21, 1'); k('s_lshl_b32 s22, s22, 10')
k('s_and_b32 s23, s21, 1'); k('s_lshl_b32 s24, s23, 8')
k('s_add_u32 s22, s22, s24')
k('v_lshl_add_u32 v70, v64, 4, s22')
k('v_lshl_add_u32 v70, v66, 11, v70')
k('v_lshl_add_u32 v70, v67, 9, v70')
for f in range(16):
    k(f'ds_read_b128 {a(68+4*f,4)}, v70 offset:{f*4096}')
    if f == 8: k('s_waitcnt lgkmcnt(4)')
k('s_waitcnt lgkmcnt(0)')
k('v_mov_b32 v73, v72'); k('v_mov_b32 v74, v72'); k('v_mov_b32 v75, v72')
k(f's_lshr_b32 s24, {s(sTEAM)}, 2'); k('s_lshl_b32 s24, s24, 14')
k(f's_and_b32 s25, {s(sTEAM)}, 3'); k('s_lshl_b32 s25, s25, 11')
k('s_add_u32 s24, s24, s25')
k('s_lshr_b32 s25, s21, 1'); k('s_lshl_b32 s25, s25, 10')
k('s_add_u32 s24, s24, s25')
k(f's_add_u32 s24, s24, {s(sACT)}')
k(f's_add_u32 s24, s24, {KV}')
k(f's_bitcmp1_b32 {s(sJ)}, 0')
k('s_cbranch_scc1 L_kv_v')
for f in range(17):
    xo = a(68+4*f,4) if f < 16 else 'v[72:75]'
    k(f'v_mfma_f32_16x16x32_bf16 v[84:87], {a(4*f,4)}, {xo}, {"0" if f==0 else "v[84:87]"}')
k('s_lshl_b32 s23, s23, 8')
k('v_lshl_add_u32 v71, v64, 4, s23')
k('v_lshl_add_u32 v71, v67, 9, v71')
k('v_lshl_add_u32 v71, v66, 3, v71')
for r in range(4):
    k(f'v_mul_f32 {v(84+r)}, v76, {v(84+r)}')
k('s_branch L_kv_st')
k.label('L_kv_v')
k.settle(4)
for f in range(17):
    xo = a(68+4*f,4) if f < 16 else 'v[72:75]'
    k(f'v_mfma_f32_16x16x32_bf16 v[84:87], {xo}, {a(4*f,4)}, {"0" if f==0 else "v[84:87]"}')
k('s_lshl_b32 s23, s23, 9')
k('s_add_u32 s23, s23, 8192')
k('v_lshl_add_u32 v71, v64, 4, s23')
k('v_lshl_add_u32 v71, v66, 8, v71')
k('v_lshl_add_u32 v71, v67, 3, v71')
for r in range(4):
    k(f'v_mul_f32 {v(84+r)}, {v(80+r)}, {v(84+r)}')
k.label('L_kv_st')
k('v_cvt_pk_bf16_f32 v84, v84, v85')
k('v_cvt_pk_bf16_f32 v85, v86, v87')
k(f'buffer_store_dwordx2 v[84:85], v71, {s(SWS,4)}, s24 offen sc1')
k(f's_lshl_b32 s21, {s(sTEAM)}, 5')
k(f's_lshl_b32 s22, {s(sJ)}, 2')
k('s_add_u32 s21, s21, s22')
k(f's_lshl_b32 s22, {s(sL)}, 10')
k('s_add_u32 s21, s21, s22')
k(f's_add_u32 s21, s21, {DFLAG}')
flag_store(21, 'sc1')
k.label('L_nokv')
k.settle(4)
distribute_stats()
k(f'v_cndmask_b32 {v(vM0)}, {v(vM0)}, {v(vM1)}, {s(sKHM,2)}')
for i in range(1,4): k(f'v_mov_b32 {v(vM0+i)}, {v(vM0)}')
A0, A1, A2 = vACC, vACC+16, vACC+32
steps = [(A0, v(vW+4*i,4), vXS, i*2048, '0' if i==0 else None) for i in range(16)]
steps += [(A1, v(vW+4*i,4), vXK, i*2048, '0' if i==0 else None) for i in range(16)]
steps += [(A1, v(vW+64,4), None, vM0, None)]
gemm_seq(steps)
red_exchange(A0, A2)
k(f'v_mul_f32 {v(vT)}, 0x3eb8aa3b, {v(vRK)}')
for i in range(16):
    k(f'v_add_f32 {v(A1+i)}, {v(A1+i)}, {v(A2+i)}')
    k(f'v_mul_f32 {v(A1+i)}, {v(vT)}, {v(A1+i)}')
QA, QB, CA, CB, S0, S1 = 128, 132, 136, 152, 168, 184
OA, OB = 64, 80
KB, VLO, VHI = 200, 208, 216
vIDX, vKA, vVA, vVI, vVA0, vMA, vMB = 224, 225, 226, 227, 228, 229, 230
pack_tile(A1, QA)
stamp(3)
k(f's_lshl_b32 s21, {s(sL)}, 10')
k(f's_add_u32 s21, s21, {DFLAG}')
k.label('L_dpoll')
k(f'buffer_load_dwordx4 v[64:67], {v(vL16)}, {s(SWS,4)}, s21 offen sc1')
k('s_waitcnt vmcnt(0)')
for i in range(4):
    k(f'v_xor_b32 {v(68+i)}, {s(sEP)}, {v(64+i)}')
k('v_or3_b32 v72, v68, v69, v70')
k('v_or_b32 v72, v72, v71')
k('v_cmp_ne_u32 vcc, 0, v72')
k('s_cbranch_vccz L_dpoll_ok')
spin_guard('L_dpoll')
k.label('L_dpoll_ok')
stamp(4)
k(f's_lshl_b32 s22, {s(sW)}, 12')
k(f's_add_u32 s23, {s(sACT)}, s22')
k(f's_add_u32 s23, s23, {KV}')
for c in range(8):
    k('s_mov_b32 m0, s22')
    for i in range(4):
        k(f'buffer_load_dwordx4 {v(vL16)}, {s(SWS,4)}, s23 offen offset:{i*1024} sc1 lds')
    if c < 7:
        k('s_add_u32 s22, s22, 16384'); k('s_add_u32 s23, s23, 16384')
k(f'v_mov_b32 {v(vIDX)}, 0xdddd')
k(f'v_and_b32 v64, 15, {v(vLANE)}')
k(f'v_lshrrev_b32 v65, 5, {v(vLANE)}')
k('v_lshlrev_b32 v64, 4, v64')
k('v_lshl_add_u32 v64, v65, 8, v64')
k(f'v_and_b32 v65, 16, {v(vLANE)}')
k('v_cmp_eq_u32 vcc, 0, v65')
k(f'v_mov_b32 v66, {L_ONES}')
k('v_mov_b32 v67, 8192')
k('v_cndmask_b32 v66, v66, v67, vcc')
k(f'v_add_u32 {v(vVA0)}, v64, v66')
k('v_mov_b32 v67, 16384')
k(f'v_cndmask_b32 {v(vVI)}, 0, v67, vcc')
k(f's_mov_b32 {s(sRETRY)}, 0')
k('s_mov_b32 s24, 1')
k('s_waitcnt vmcnt(24)')
k('s_barrier')
stamp(5)
k.label('L_att_start')
k(f'v_mov_b32 {v(vMA)}, 0xff800000')
k(f'v_mov_b32 {v(vMB)}, 0xff800000')
k(f'v_mov_b32 {v(vKA)}, {v(vL16)}')
k('s_mov_b32 s25, 0')
k.label('L_mx')
k(f'ds_read_b128 {v(KB,4)}, {v(vKA)}')
k('s_add_u32 s25, s25, 1')
k('s_and_b32 s26, s25, 7')
k('s_cmp_eq_u32 s26, 0')
k('s_cselect_b32 s26, 8192, 0')
k('s_add_u32 s26, s26, 1024')
k('s_waitcnt lgkmcnt(0)')
k(f'v_mfma_f32_32x32x16_bf16 {v(S0,16)}, {v(KB,4)}, {v(QA,4)}, 0')
k(f'v_mfma_f32_32x32x16_bf16 {v(S1,16)}, {v(KB,4)}, {v(QB,4)}, 0')
k(f'v_add_u32 {v(vKA)}, s26, {v(vKA)}')
for i in range(8):
    k(f'v_max3_f32 {v(vMA)}, {v(vMA)}, {v(S0+2*i)}, {v(S0+2*i+1)}')
for i in range(8):
    k(f'v_max3_f32 {v(vMB)}, {v(vMB)}, {v(S1+2*i)}, {v(S1+2*i+1)}')
k('s_cmp_lt_u32 s25, s24')
k('s_cbranch_scc1 L_mx')
k(f'v_mov_b32 v64, {v(vMA)}'); k(f'v_mov_b32 v65, {v(vMB)}')
k(f'v_permlane32_swap_b32 v64, {v(vMA)}')
k(f'v_permlane32_swap_b32 v65, {v(vMB)}')
k(f'v_mov_b32 {v(vKA)}, {v(vL16)}')
k(f'v_mov_b32 {v(vVA)}, {v(vVA0)}')
k(f'ds_read_b128 {v(KB,4)}, {v(vKA)}')
k(f'ds_read_b128 {v(KB+4,4)}, {v(vKA)} offset:1024')
k(f'ds_read_b128 {v(VLO,4)}, {v(vVA)}')
k(f'ds_read_b128 {v(VHI,4)}, {v(vVA)} offset:512')
k(f'v_max_f32 v64, v64, {v(vMA)}')
k(f'v_max_f32 v65, v65, {v(vMB)}')
for i in range(16):
    k(f'v_sub_f32 {v(CA+i)}, 0, v64')
for i in range(16):
    k(f'v_sub_f32 {v(CB+i)}, 0, v65')
for i in range(32):
    k(f'v_mov_b32 {v(OA+i)}, 0')
for i in range(8):
    k(f'v_mov_b32 {v(S1+8+i)}, 0')
for i in range(4):
    k(f'v_mov_b32 {v(VHI+4+i)}, 0')
k('s_waitcnt lgkmcnt(0)')
k(f'v_mfma_f32_32x32x16_bf16 {v(S0,16)}, {v(KB,4)}, {v(QA,4)}, {v(CA,16)}')
k.settle(12)
for c in range(8):
    if c == 1:
        k(f's_cmp_lg_u32 {s(sRETRY)}, 0')
        k('s_cbranch_scc1 L_att_nobar')
        k('s_waitcnt vmcnt(0)')
        k('s_barrier')
        k.label('L_att_nobar')
    k(f's_call_b64 {s(sLINK,2)}, L_att_body')
k.settle(2)
k(f'v_smfmac_f32_32x32x32_bf16 {v(OB,16)}, {v(VHI+4,4)}, {v(S1+8,8)}, {v(vIDX)}')
k.settle(16)
k(f'v_mul_f32 v96, 0x5f800000, {v(OA+8)}')
k(f'v_mul_f32 v97, 0x5f800000, {v(OB+8)}')
k('v_mul_f32 v96, 0, v96')
k('v_fma_f32 v96, v97, 0, v96')
for i in range(8):
    k(f'v_fma_f32 v96, {v(OA+i)}, 0, v96')
    k(f'v_fma_f32 v96, {v(OB+i)}, 0, v96')
k('v_cmp_u_f32 vcc, v96, v96')
if FORCE_RETRY: k('s_mov_b64 vcc, 1')
k('s_cbranch_vccz L_att_ok')
k(f's_cmp_lg_u32 {s(sRETRY)}, 0')
k('s_cbranch_scc1 L_att_ok')
k(f's_mov_b32 {s(sRETRY)}, 1')
k('s_mov_b32 s24, 64')
k('s_branch L_att_start')
k.label('L_att_ok')
stamp(6)
k(f'v_rcp_f32 v96, {v(OA+8)}')
k(f'v_rcp_f32 v97, {v(OB+8)}')
for i in range(8):
    k(f'v_mul_f32 {v(OA+i)}, v96, {v(OA+i)}')
    k(f'v_mul_f32 {v(OB+i)}, v97, {v(OB+i)}')
for i in range(4):
    k(f'v_cvt_pk_bf16_f32 {v(100+i)}, {v(OA+2*i)}, {v(OA+2*i+1)}')
    k(f'v_cvt_pk_bf16_f32 {v(104+i)}, {v(OB+2*i)}, {v(OB+2*i+1)}')
k(f's_add_u32 s22, {s(sACT)}, {s(sT64)}')
k(f's_add_u32 s22, s22, {s(sMT)}')
k(f's_add_u32 s22, s22, {OO}')
team_flag_addr(24, 1)
def f(fl):
    k(f'buffer_store_dwordx4 v[100:103], {v(vL16)}, {s(SWS,4)}, s22 offen {fl}')
    k(f'buffer_store_dwordx4 v[104:107], {v(vL16)}, {s(SWS,4)}, s22 offen offset:2048 {fl}')
    flag_store(24, fl)
two_ways(f)
stamp(7)
k(f's_lshl_b32 s25, {s(sJ)}, 1')
k(f's_add_u32 s25, s25, {s(sS)}')
k('s_lshl_b32 s25, s25, 15')
k(f's_lshl_b32 s27, {s(sKH)}, 14')
k('s_add_u32 s25, s25, s27')
k(f's_add_u32 s25, s25, {WOP}')
load_frags([v(vW+4*i,4) for i in range(16)], 25)
poll_team(1)
stamp(8)
dma_image(OO)
k('s_waitcnt vmcnt(0)')
k('s_barrier')
stamp(9)
steps = [(A0, v(vW+4*i,4), vXS, i*2048, '0' if i==0 else None) for i in range(16)]
steps += [(A1, v(vW+4*i,4), vXK, i*2048, v(vXR,16) if i==0 else None) for i in range(16)]
gemm_seq(steps)
red_exchange(A0, A2)
for i in range(16):
    k(f'v_add_f32 {v(vXR+i)}, {v(A1+i)}, {v(A2+i)}')
stamp(10)
publish_x(X1, X1S, 2)
stamp(11)
def w1frag(st, i):
    if i < 32: return a(st*128 + 4*i, 4)
    return v(vW + 4*st, 4)
k(f's_mul_i32 s25, {s(sJ)}, 7')
k(f's_add_u32 s25, s25, {s(sW)}')
k(f's_mul_i32 s25, s25, {33*1024}')
k(f's_add_u32 s25, s25, {W1P}')
k(f's_add_u32 s26, s25, {4*33*1024}')
load_frags([w1frag(0,i) for i in range(33)], 25)
k(f's_cmp_eq_u32 {s(sW)}, 3')
k('s_cbranch_scc1 L_up_now2')
k('s_waitcnt vmcnt(24)')
load_frags([w1frag(1,i) for i in range(33)], 26)
k.label('L_up_now2')
poll_team(2)
stamp(12)
dma_image(X1, X1S)
k('s_waitcnt vmcnt(0)')
k('s_barrier')
stamp(13)
compute_stats(200)
distribute_stats()
for i in range(1,4):
    k(f'v_mov_b32 {v(vM0+i)}, {v(vM0)}')
    k(f'v_mov_b32 {v(vM1+i)}, {v(vM1)}')
k(f'v_mul_f32 v140, 0xbfb8aa3b, {v(vR0)}')
k(f'v_mul_f32 v141, 0xbfb8aa3b, {v(vR1)}')
k(f's_mul_i32 s22, {s(sTEAM)}, {224*1024}')
k(f's_add_u32 s22, s22, {s(sACT)}')
k(f's_mul_i32 s23, {s(sJ)}, {14*2048}')
k('s_add_u32 s22, s22, s23')
k(f's_lshl_b32 s23, {s(sW)}, 12')
k('s_add_u32 s22, s22, s23')
k(f's_add_u32 s22, s22, {HH}')
team_flag_addr(24, 3)
for st in range(2):
    if st == 1:
        k(f's_cmp_eq_u32 {s(sW)}, 3')
        k('s_cbranch_scc1 L_up_done')
        k(f's_add_u32 s22, s22, {8*2048}')
    steps = []
    for i in range(32):
        steps.append((A0, w1frag(st,i), vL16, i*2048, '0' if i==0 else None))
        steps.append((A1, w1frag(st,i), vL16, i*2048+1024, '0' if i==0 else None))
    steps.append((A0, w1frag(st,32), None, vM0, None))
    steps.append((A1, w1frag(st,32), None, vM1, None))
    gemm_seq(steps)
    for mt, A in ((0, A0), (1, A1)):
        T = 144
        for i in range(16): k(f'v_mul_f32 {v(T+i)}, {v(140+mt)}, {v(A+i)}')
        for i in range(16): k(f'v_exp_f32 {v(T+i)}, {v(T+i)}')
        for i in range(16): k(f'v_add_f32 {v(T+i)}, 1.0, {v(T+i)}')
        for i in range(16): k(f'v_rcp_f32 {v(T+i)}, {v(T+i)}')
        for i in range(16): k(f'v_mul_f32 {v(T+i)}, {v(T+i)}, {v(A+i)}')
        pack_tile(T, 160+8*mt+16*st)
    def f(fl):
        for mt in range(2):
            for ks in range(2):
                k(f'buffer_store_dwordx4 {v(160+8*mt+16*st+4*ks,4)}, {v(vL16)}, {s(SWS,4)}, s22 offen offset:{ks*2048+mt*1024} {fl}')
    two_ways(f)
k.label('L_up_done')
two_ways(lambda fl: flag_store(24, fl))
stamp(14)
k(f's_lshl_b32 s25, {s(sJ)}, 1')
k(f's_add_u32 s25, s25, {s(sS)}')
k(f's_mul_i32 s25, s25, {112*1024}')
k(f's_mul_i32 s27, {s(sKH)}, {56*1024}')
k('s_add_u32 s25, s25, s27')
k(f's_add_u32 s25, s25, {W2P}')
load_frags([a(4*i,4) for i in range(56)], 25)
poll_team(3)
stamp(15)
k(f's_mul_i32 s26, {s(sTEAM)}, {224*1024}')
k(f's_add_u32 s26, s26, {s(sACT)}')
k(f's_mul_i32 s27, {s(sKH)}, {112*1024}')
k('s_add_u32 s26, s26, s27')
k(f's_mul_i32 s27, {s(sS)}, {7*1024}')
k('s_add_u32 s26, s26, s27')
k(f's_add_u32 s26, s26, {HH}')
k(f's_mul_i32 s28, {s(sW)}, {7*1024}')
def hr_dma(i):
    k(f's_add_u32 s22, s28, {(i%5)*28*1024}')
    k(f's_add_u32 s23, s26, {i*14*1024}')
    dma(7, 22, 23)
for i in range(5): hr_dma(i)
k(f's_mul_i32 s21, {s(sKH)}, {15*1024}')
k(f'v_add_u32 v140, s21, {v(vL16)}')
k(f's_mul_i32 s21, {s(sKH)}, {13*1024}')
k('s_add_u32 s21, s21, 1024')
k(f'v_add_u32 v143, s21, {v(vL16)}')
for b in (1,2):
    k(f'v_add_u32 {v(140+b)}, {b*56*1024}, v140')
    k(f'v_add_u32 {v(143+b)}, {b*56*1024}, v143')
outstanding = [0,1,2,3,4]
for i in range(8):
    later = [x for x in outstanding if x > i]
    k(f's_waitcnt vmcnt({7*len(later)})')
    outstanding = later
    k('s_barrier')
    if i >= 1 and i+4 <= 7:
        hr_dma(i+4); outstanding.append(i+4)
    sl = i % 5
    bK = 140 + sl//2; bS = 143 + sl//2; off = (sl%2)*28*1024
    steps = []
    for t in range(7):
        first = (i == 0 and t == 0)
        steps.append((A0, a(4*(7*i+t),4), bS, off+t*2048, '0' if first else None))
        steps.append((A1, a(4*(7*i+t),4), bK, off+t*2048, '0' if first else None))
    gemm_seq(steps)
red_exchange(A0, A2)
for i in range(16):
    k(f'v_add_f32 {v(A1+i)}, {v(A1+i)}, {v(A2+i)}')
    k(f'v_fma_f32 {v(vXR+i)}, {v(A1+i)}, {v(vRK)}, {v(vXR+i)}')
stamp(16)
k(f's_add_u32 {s(sL)}, {s(sL)}, 1')
k(f's_add_u32 {s(sACT)}, {s(sACT)}, {LS}')
k(f's_add_u32 {s(sFB)}, {s(sFB)}, {4*4096}')
if STAMP: k(f's_add_u32 {s(sSTI)}, {s(sSTI)}, 17')
k(f's_cmp_lt_u32 {s(sL)}, 2')
k('s_cbranch_scc1 L_layer')
pack_tile(vXR, vACC)
swap_nat(vACC)
k(f's_mov_b32 {s(SRC)}, {s(sOUT)}')
k(f's_mov_b32 {s(SRC+1)}, {s(sOUT+1)}')
k(f's_mov_b32 {s(SRC+2)}, {2048*1024}')
k(f'v_and_b32 v3, 31, {v(vLANE)}')
k(f'v_lshrrev_b32 v7, 5, {v(vLANE)}')
k('v_lshlrev_b32 v3, 10, v3')
k('v_lshl_add_u32 v3, v7, 4, v3')
k(f's_lshl_b32 s21, {s(sKH)}, 15')
k(f's_add_u32 s21, s21, {s(sT64)}')
k(f's_lshl_b32 s22, {s(sJ)}, 7')
k('s_add_u32 s21, s21, s22')
k(f's_lshl_b32 s22, {s(sS)}, 6')
k('s_add_u32 s21, s21, s22')
k(f'buffer_store_dwordx4 {v(vACC,4)}, v3, {s(SRC,4)}, s21 offen')
k(f'buffer_store_dwordx4 {v(vACC+4,4)}, v3, {s(SRC,4)}, s21 offen offset:32')
if STAMP:
    k('s_waitcnt vmcnt(0)')
    stamp(0)
    k('s_lshl_b32 s21, s2, 2')
    k(f's_add_u32 s21, s21, {s(sW)}')
    k('s_lshl_b32 s21, s21, 8')
    k(f's_add_u32 s21, s21, {STAMPS}')
    k(f'v_lshlrev_b32 v3, 2, {v(vLANE)}')
    k(f'buffer_store_dword {v(vSTMP)}, v3, {s(SWS,4)}, s21 offen')
k.label('L_exit')
k('s_endpgm')

def att_body(kk):
    for t in range(8):
        b = 4*(t & 1); nb = 4*((t+1) & 1)
        ex = lambda S, i, e64=False: kk(f'v_exp_f32{"_e64" if e64 else ""} {v(S+i)}, {v(S+i)}')
        ex(S0,0); ex(S0,1)
        kk(f'v_smfmac_f32_32x32x32_bf16 {v(OB,16)}, {v(VHI+nb,4)}, {v(S1+8,8)}, {v(vIDX)}')
        for i in range(2,6): ex(S0,i)
        kk(f'v_mfma_f32_32x32x16_bf16 {v(S1,16)}, {v(KB+b,4)}, {v(QB,4)}, {v(CB,16)}')
        koff = (t+2)*1024 if t < 6 else 16384 + (t-6)*1024
        kk(f'ds_read_b128 {v(KB+b,4)}, {v(vKA)} offset:{koff}')
        if t == 7:
            kk(f'v_add_u32 {v(vVA)}, {v(vVI)}, {v(vVA)}')
            kk(f'v_add_u32 {v(vKA)}, s27, {v(vKA)}')
        voff = (t+1)*1024 if t < 7 else 0
        ex(S0,6); ex(S0,7)
        kk(f'ds_read_b128 {v(VLO+nb,4)}, {v(vVA)} offset:{voff}')
        ex(S0,8); ex(S0,9)
        kk(f'v_smfmac_f32_32x32x32_bf16 {v(OA,16)}, {v(VLO+b,4)}, {v(S0,8)}, {v(vIDX)}')
        kk(f'ds_read_b128 {v(VHI+nb,4)}, {v(vVA)} offset:{voff+512}')
        for i in range(10,16): ex(S0,i)
        ex(S1,0); ex(S1,1)
        kk(f'v_smfmac_f32_32x32x32_bf16 {v(OA,16)}, {v(VHI+b,4)}, {v(S0+8,8)}, {v(vIDX)}')
        for i in range(2,6): ex(S1,i)
        kk(f'v_mfma_f32_32x32x16_bf16 {v(S0,16)}, {v(KB+nb,4)}, {v(QA,4)}, {v(CA,16)}')
        ex(S1,6); ex(S1,7); ex(S1,8); ex(S1,9)
        kk(f'v_smfmac_f32_32x32x32_bf16 {v(OB,16)}, {v(VLO+b,4)}, {v(S1,8)}, {v(vIDX)}')
        kk('s_waitcnt lgkmcnt(0)')
        ex(S1,10); ex(S1,11,True)
        for i in range(12,16): ex(S1,i)
chk = Emitter(); att_body(chk); chk.strict = True; att_body(chk)
k.raw('.p2align 6')
k.label('L_att_body')
k.hz = Hazard(); k.strict = True
k('s_mov_b32 s27, 16384')
att_body(k)
k(f's_setpc_b64 {s(sLINK,2)}')
k.strict = False

k.raw(f'''.section .rodata,"a"
.p2align 6
.amdhsa_kernel {NAME}_kernel
  .amdhsa_next_free_vgpr 512
  .amdhsa_next_free_sgpr 102
  .amdhsa_accum_offset 256
  .amdhsa_group_segment_fixed_size 0
  .amdhsa_kernarg_size 88
  .amdhsa_user_sgpr_count 2
  .amdhsa_user_sgpr_kernarg_segment_ptr 1
  .amdhsa_system_sgpr_workgroup_id_x 1
.end_amdhsa_kernel''')
out = [x for x in sys.argv[1:] if not x.startswith('--')]
open(out[0] if out else f'cdna_kernels/{NAME}.s', 'w').write(k.text())
print('nops inserted:', k.nops_inserted, file=sys.stderr)
```

```python
import sys
from asmlib import *

NAME = 'interleave_layers__grouped_kv_mqa__dense_activation_silu__prompt'
ARG = sys.argv
STAMP = '--stamp' in ARG or '--clk' in ARG
STI = 's_memtime' if '--clk' in ARG else 's_memrealtime'
FORCE_SLOW = '--slow' in ARG
FORCE_RETRY = '--retry' in ARG
def opt(name, dflt):
    for x in ARG:
        if x.startswith('--'+name+'='): return int(x.split('=')[1])
    return dflt

PFLAG = 0x1000; RFLAG = 0x1400; GFLAG = 0x2000; LFLAG = 0x2800; TFLAG = 0x4000; NPH = 5
WOP = 0x10000; W1P = 0x90000; W2P = 0x260000
XP = 0x420000; OQ = 0x620000; ST = 0x820000; KVG = 0x860000; KVL = 0x8A0000; HH = 0x900000
STAMPS = 0x4000000
OOB = 0x20000000
K = 1024
L_X1S = 64*K; L_RP = 0; L_RED = 16*K; L_WQ = 72*K; L_ONES = 136*K; L_CS = 140*K; L_FW = 142*K; L_WKV = 144*K
SWS, SQ, SKV, SRC = 4, 8, 12, 16
sTEAM, sJ, sW, sEP, sFAST, sL, sS, sKH, sTO, sONE, sMYF, sTFL = range(20, 32)
sKHM, sMASK, sEX, sLINK, sST, sOUT, sMASKX = 32, 34, 36, 38, 40, 42, 44
sRETRY, sSTI, sKVW, sXP, sSTP, sXA, sXB, sGF, sKVB, sFV, sGFL = range(46, 57)
sWO = 57; sW1 = 59; sW2 = 69; sHP = 71; sHL = 73; sWQ = 74; sDQ = 75; sKVS = 77; sKFL = 78; sSTQ = 79
T0 = 80
sPTR = 80
vL16, vLANE, vFLG, vTMP, vSW, vL16b, vRR, vTM2 = range(8)
vXR = 8
vR0, vR1, vRK, vT = 24, 25, 26, 27
vM0, vM1 = 28, 32
vEPO, vSTMP, vCSKV, vTR = 36, 37, 38, 39
vRW = 40
vRWD = 43
ACC = 44
XF = 108
WF = 180
CS1 = 244
OA, OB, CA, CB, S0, S1, QA, QB, KB, VLO, VHI = 44, 60, 76, 92, 108, 124, 140, 144, 148, 156, 164
vIDX, vKA, vVA, vVI, vVA0, vMA, vMB = 172, 173, 174, 175, 176, 177, 178
vFL = 252; vFW = 179

k = Emitter()

class VM:
    def __init__(self): self.n = 0; self.tags = {}
    def issue(self, tag=None):
        self.n += 1
        if tag is not None: self.tags[tag] = self.n
    def wait(self, tag): return f's_waitcnt vmcnt({min(63, self.n - self.tags[tag])})'
vm = VM()

def stamp(i):
    if not STAMP: return
    k(f'{STI} {s(sST,2)}')
    k(f's_add_u32 m0, {s(sSTI)}, {i}')
    k('s_waitcnt lgkmcnt(0)')
    k(f'v_writelane_b32 {v(vSTMP)}, {s(sST)}, m0')

def ld(dst, sreg, i, tag=None):
    vm.issue(tag)
    return f'buffer_load_dwordx4 {dst}, {v(vL16 if i < 4 else vL16b)}, {s(SWS,4)}, {s(sreg)} offen offset:{(i%4)*1024} sc1'

def spin_guard(lbl_loop):
    k(f's_sub_u32 {s(sTO)}, {s(sTO)}, 1')
    k(f's_cmp_eq_u32 {s(sTO)}, 0')
    k('s_cbranch_scc1 L_exit')
    k(f's_branch {lbl_loop}')

COLD = []
def flag_check(reg, mask):
    L = [f'v_xor_b32 {v(reg)}, {s(sEP)}, {v(reg)}', f'v_cmp_lt_u32 vcc, 7, {v(reg)}']
    return L
def poll_issue(reg, sreg, off, tag):
    vm.issue(tag)
    return f'buffer_load_dword {v(reg)}, {v(vFLG)}, {s(SWS,4)}, {s(sreg)} offen offset:{off} sc1'
def poll_check(reg, sreg, off, tag, mask):
    lr = k.newlabel('L_spin'); lb = k.newlabel('L_back')
    L = [vm.wait(tag), f'v_xor_b32 {v(reg)}, {s(sEP)}, {v(reg)}', f'v_cmp_lt_u32 vcc, 7, {v(reg)}']
    if mask is not None: L += [f's_and_b64 vcc, vcc, {s(mask,2)}', f's_cbranch_scc1 {lr}']
    else: L += [f's_cbranch_vccnz {lr}']
    L += [lb + ':']
    def cold():
        k.label(lr)
        k(f's_sub_u32 {s(sTO)}, {s(sTO)}, 1')
        k('s_cbranch_scc1 L_exit')
        k(f'buffer_load_dword {v(reg)}, {v(vFLG)}, {s(SWS,4)}, {s(sreg)} offen offset:{off} sc1')
        k('s_waitcnt vmcnt(0)')
        k(f'v_xor_b32 {v(reg)}, {s(sEP)}, {v(reg)}')
        k(f'v_cmp_lt_u32 vcc, 7, {v(reg)}')
        if mask is not None:
            k(f's_and_b64 vcc, vcc, {s(mask,2)}'); k(f's_cbranch_scc1 {lr}')
        else: k(f's_cbranch_vccnz {lr}')
        k(f's_branch {lb}')
    COLD.append(cold)
    return L
def poll4_issue(sreg, tag):
    vm.issue(tag)
    return f'buffer_load_dwordx4 {v(vFL,4)}, {v(vL16)}, {s(SWS,4)}, {s(sreg)} offen sc1'
def poll4_check(sreg, tag):
    lr = k.newlabel('L_spin'); lb = k.newlabel('L_back')
    chk = [f'v_xor_b32 {v(vFL+i)}, {s(sEP)}, {v(vFL+i)}' for i in range(4)]
    chk += [f'v_or3_b32 {v(vFL)}, {v(vFL)}, {v(vFL+1)}, {v(vFL+2)}', f'v_or_b32 {v(vFL)}, {v(vFL)}, {v(vFL+3)}',
            f'v_cmp_lt_u32 vcc, 7, {v(vFL)}']
    def cold():
        k.label(lr)
        k(f's_sub_u32 {s(sTO)}, {s(sTO)}, 1')
        k('s_cbranch_scc1 L_exit')
        k(f'buffer_load_dwordx4 {v(vFL,4)}, {v(vL16)}, {s(SWS,4)}, {s(sreg)} offen sc1')
        k('s_waitcnt vmcnt(0)')
        for x in chk: k(x)
        k(f's_cbranch_vccnz {lr}')
        k(f's_branch {lb}')
    COLD.append(cold)
    return [vm.wait(tag)] + chk + [f's_cbranch_vccnz {lr}', lb + ':']

def emit(L):
    for x in L: k(x)

def two_ways(fn):
    l1 = k.newlabel('L_slow'); l2 = k.newlabel('L_join')
    n0 = vm.n
    A = fn('')
    vm.n = n0
    B = fn('sc1')
    def cold():
        k.label(l1); k.settle(16); emit(B); k(f's_branch {l2}')
    COLD.append(cold)
    return [f's_cmp_eq_u32 {s(sFAST)}, 0', f's_cbranch_scc1 {l1}'] + A + [l2 + ':']

def flag_store(sreg, off, fl):
    vm.issue()
    return ['s_mov_b64 exec, 1', f'buffer_store_dword {v(vEPO)}, off, {s(SWS,4)}, {s(sreg)} offset:{off} {fl}', 's_mov_b64 exec, -1']
def st4(src, sreg, off, fl, tag=None):
    vm.issue(tag)
    return f'buffer_store_dwordx4 {v(src,4)}, {v(vL16)}, {s(SWS,4)}, {s(sreg)} offen offset:{off} {fl}'

def pack_tile(src, dst):
    return [f'v_cvt_pk_bf16_f32 {v(dst+i)}, {v(src+2*i)}, {v(src+2*i+1)}' for i in range(8)]
def swap_nat(P):
    return [f'v_permlane32_swap_b32 {v(P+x)}, {v(P+y)}' for x, y in ((0,2),(1,3),(4,6),(5,7))]
mfma = lambda d, A, B, c=None: f'v_mfma_f32_32x32x16_bf16 {v(d,16)}, {A}, {B}, {c if c is not None else v(d,16)}'

def publish_x(ph):
    P = ACC
    emit(pack_tile(vXR, P)); emit(swap_nat(P))
    def f(fl):
        L = [st4(P, sXP, 0, fl), st4(P+4, sXP, 1024, fl)]
        for i in range(8):
            L.append(f'v_dot2_f32_bf16 {v(P+8)}, {v(P+i)}, {s(sONE)}, {"0" if i==0 else v(P+8)}')
            L.append(f'v_dot2_f32_bf16 {v(P+9)}, {v(P+i)}, {v(P+i)}, {"0" if i==0 else v(P+9)}')
        L += [f'v_permlane32_swap_b32 {v(P+8)}, {v(P+9)}', f'v_add_f32 {v(P+8)}, {v(P+8)}, {v(P+9)}']
        vm.issue()
        L += [f'buffer_store_dword {v(P+8)}, {v(vSW)}, {s(SWS,4)}, {s(sSTP)} offen {fl}', 's_waitcnt vmcnt(0)']
        return L + flag_store(sMYF, ph*128, fl)
    emit(two_ways(f))

def finish_stats(T, dR, dM):
    return [f'v_mul_f32 {v(T)}, 0x3b000000, {v(T)}', f'v_mul_f32 {v(T+1)}, 0x3b000000, {v(T+1)}',
            f'v_fma_f32 {v(T+1)}, -{v(T)}, {v(T)}, {v(T+1)}', f'v_max_f32 {v(T+1)}, 0, {v(T+1)}',
            f'v_add_f32 {v(T+1)}, 0x3727c5ac, {v(T+1)}', f'v_rsq_f32 {v(dR)}, {v(T+1)}',
            f'v_cvt_pk_bf16_f32 {v(dM)}, -{v(T)}, -{v(T)}']

def red_write(tile, d):
    return [f'ds_write_b128 {v(vRW+d-1)}, {v(tile+4*i,4)} offset:{i*1024}' for i in range(4)]
def red_read(T):
    return [f'ds_read_b128 {v(T+4*i,4)}, {v(vRR)} offset:{i*1024}' for i in range(12)]

def gemm4(tagp, waits=True, cinit='0', hook_mid=None, LAG=3, fill=()):
    Tt = [ACC+16*i for i in range(4)]
    W = lambda ks, nn: v(WF + 8*ks + 4*nn, 4)
    for ks in range(8):
        if waits: k(vm.wait(f'{tagp}{ks}'))
        k(mfma(Tt[0], W(ks,0), v(XF+4*ks,4), '0' if ks == 0 else None))
        k(mfma(Tt[1], W(ks,1), v(XF+4*ks,4), '0' if ks == 0 else None))
        if fill: emit(fill.pop(0)())
    if hook_mid: emit(hook_mid)
    wr = red_write(Tt[0], 3) + red_write(Tt[1], 2)
    for ks in range(8 + LAG):
        if ks < 8:
            if waits: k(vm.wait(f'{tagp}{8+ks}'))
            k(mfma(Tt[2], W(ks,0), v(XF+32+4*ks,4), '0' if ks == 0 else None))
        if ks >= LAG:
            j = ks - LAG
            k(mfma(Tt[3], W(j,1), v(XF+32+4*j,4), cinit if j == 0 else None))
        if fill: emit(fill.pop(0)())
        if ks >= 2 and wr:
            k(wr.pop(0))
            if ks >= LAG and wr: k(wr.pop(0))
    emit(wr)
    emit(red_write(Tt[2], 1))

def x_loads(sA, sB, tagp):
    for i in range(8): k(ld(v(XF+4*i,4), sA, i, f'{tagp}{i}'))
    for i in range(8): k(ld(v(XF+32+4*i,4), sB, i, f'{tagp}{8+i}'))

def wq_dma():
    G = []
    for i in range(16):
        def g(i=i):
            g = []
            if i == 0: g += [f's_lshl_b32 s91, {s(sW)}, 14', f's_add_u32 m0, s91, {L_WQ}', f's_mov_b32 s90, {s(sWQ)}']
            else: g += ['s_add_u32 m0, m0, 1024', f's_add_u32 s90, s90, {s(sDQ + ((i-1) & 1))}']
            g.append(f'buffer_load_dwordx4 {v(vRWD)}, {s(SQ,4)}, s90 offen lds')
            vm.issue()
            return g
        G.append(g)
    return G
def wkv_dma():
    G = []
    lb = k.newlabel('L_nokvdma')
    g = [f's_cmp_eq_u32 {s(sKVW)}, 0', f's_cbranch_scc1 {lb}']
    for i in range(16):
        if i % 4 == 0: g += [f's_mov_b32 m0, {L_WKV + i*1024}', f's_movk_i32 s90, {i*1024}']
        g.append(f'buffer_load_dwordx4 {v(vL16)}, {s(SKV,4)}, s90 offen offset:{(i%4)*1024} lds')
    g.append(lb + ':')
    G.append(g)
    return G

k.raw(f'''; single persistent kernel: 256 workgroups (one per CU), 4 waves each.
; @launch grid=(256,1,1) block=(256,1,1) lds=163840
.amdgcn_target "amdgcn-amd-amdhsa--gfx950"
.text
.globl {NAME}_kernel
.p2align 8
.type {NAME}_kernel,@function
{NAME}_kernel:''')
k('s_cmp_ge_u32 s2, 256')
k('s_cbranch_scc1 L_exit')
k(f's_load_dwordx2 {s(SWS,2)}, s[0:1], 80')
k(f's_load_dwordx16 {s(sPTR,16)}, s[0:1], 0')
k(f's_load_dwordx2 {s(sOUT,2)}, s[0:1], 64')
k('v_lshrrev_b32 v3, 6, v0')
k(f'v_and_b32 {v(vLANE)}, 63, v0')
k(f'v_readfirstlane_b32 {s(sW)}, v3')
k(f'v_lshlrev_b32 {v(vL16)}, 4, {v(vLANE)}')
k(f's_mov_b32 {s(SWS+2)}, 0x10000000')
for r in (SWS, SQ, SKV, SRC): k(f's_mov_b32 {s(r+3)}, 0x20000')
k(f's_mov_b32 {s(SQ+2)}, {512*1024}')
k(f's_mov_b32 {s(SKV+2)}, {512*32}')
k(f's_mov_b32 {s(SRC+2)}, {2048*1024}')
k('s_and_b32 s96, s2, 7')
k('s_lshr_b32 s97, s2, 3')
k(f's_and_b32 {s(sJ)}, s97, 7')
k('s_lshr_b32 s97, s97, 3')
k('s_lshl_b32 s96, s96, 2')
k(f's_add_u32 {s(sTEAM)}, s96, s97')
k(f's_and_b32 {s(sS)}, {s(sW)}, 1')
k(f's_lshr_b32 {s(sKH)}, {s(sW)}, 1')
k(f'v_and_b32 v3, 31, {v(vLANE)}')
k(f'v_lshrrev_b32 v7, 5, {v(vLANE)}')
k('v_lshlrev_b32 v64, 10, v3')
k('v_lshl_add_u32 v64, v7, 3, v64')
k(f's_lshl_b32 s96, {s(sTEAM)}, 16')
k(f's_lshl_b32 s97, {s(sKH)}, 15')
k('s_add_u32 s97, s97, s96')
k(f's_lshl_b32 s98, {s(sJ)}, 7')
k(f's_lshl_b32 s99, {s(sS)}, 6')
k('s_add_u32 s98, s98, s99')
k('s_add_u32 s97, s97, s98')
k(f'v_lshrrev_b32 v65, 2, {v(vLANE)}')
k(f'v_and_b32 v74, 3, {v(vLANE)}')
k('v_lshlrev_b32 v74, 4, v74')
k(f'v_lshl_add_u32 {v(vRWD)}, v65, 10, v74')
k(f's_lshl_b32 {s(sWQ)}, {s(sW)}, 17')
k('s_xor_b32 s99, s98, 64')
k(f's_add_u32 {s(sWQ)}, {s(sWQ)}, s99')
k('s_sub_u32 s99, s98, s99')
k(f's_mov_b32 {s(sDQ)}, s99')
k(f's_sub_u32 {s(sDQ+1)}, {16384}, s99')
k(f's_lshr_b32 s99, {s(sJ)}, 2')
k('s_lshl_b32 s99, s99, 1')
k(f's_cmp_eq_u32 s99, {s(sW)}')
k(f's_cselect_b32 {s(sKVW)}, 1, 0')
k('s_waitcnt lgkmcnt(0)')
if STAMP:
    k(f's_mov_b32 {s(sSTI)}, 0'); k(f'v_mov_b32 {v(vSTMP)}, 0')
stamp(0)
k(f's_load_dword {s(sEP)}, {s(SWS,2)}, 0')
k(f's_mov_b32 {s(SRC)}, {s(sPTR)}')
k(f's_mov_b32 {s(SRC+1)}, {s(sPTR+1)}')
k(f's_mov_b32 {s(SQ)}, {s(sPTR+2)}')
k(f's_mov_b32 {s(SQ+1)}, {s(sPTR+3)}')
k(f's_bitcmp1_b32 {s(sJ)}, 0')
k(f's_cselect_b32 {s(SKV)}, {s(sPTR+6)}, {s(sPTR+4)}')
k(f's_cselect_b32 {s(SKV+1)}, {s(sPTR+7)}, {s(sPTR+5)}')
for q in range(4):
    k(f'buffer_load_dwordx2 {v(66+2*q,2)}, v64, {s(SRC,4)}, s97 offen offset:{q*16}')
k('s_lshl_b32 s97, s2, 2')
k(f's_add_u32 s97, s97, {s(sW)}')
k('s_lshr_b32 s98, s97, 1')
k('s_cmp_ge_u32 s97, 448')
k('s_cbranch_scc1 L_job_n')
k(f's_mov_b32 {s(SRC)}, {s(sPTR+12)}'); k(f's_mov_b32 {s(SRC+1)}, {s(sPTR+13)}'); k(f's_mov_b32 {s(SRC+2)}, {512*3584}')
k('s_lshr_b32 s99, s98, 3'); k('s_lshl_b32 s99, s99, 1'); k(f's_add_u32 s99, s99, {s(sS)}')
k('s_and_b32 s98, s98, 7')
k(f's_mul_i32 s100, s99, {33*1024}'); k(f's_add_u32 s100, s100, {W1P}')
k('s_lshr_b32 s101, s98, 2'); k('s_lshl_b32 s101, s101, 9')
k('s_and_b32 s3, s98, 3'); k('s_lshl_b32 s3, s3, 2')
k('s_add_u32 s101, s101, s3'); k('s_add_u32 s101, s101, s100'); k(f's_add_u32 s101, s101, {32*1024}')
k('s_movk_i32 s3, 3584')
k('s_branch L_job_go')
k.label('L_job_n')
k('s_cmp_ge_u32 s97, 896')
k(f's_cselect_b32 {s(SRC)}, {s(sPTR+8)}, {s(sPTR+14)}')
k(f's_cselect_b32 {s(SRC+1)}, {s(sPTR+9)}, {s(sPTR+15)}')
k(f's_mov_b32 s99, {1792*1024}'); k(f's_cselect_b32 {s(SRC+2)}, {512*1024}, s99')
k('s_movk_i32 s99, 224'); k('s_cselect_b32 s99, 448, s99'); k('s_sub_u32 s98, s98, s99')
k('s_cmp_ge_u32 s97, 896')
k(f's_mov_b32 s101, {112*1024}'); k(f's_cselect_b32 s101, {32*1024}, s101')
k(f's_mov_b32 s100, {W2P}'); k(f's_cselect_b32 s100, {WOP}, s100')
k('s_and_b32 s99, s98, 7'); k('s_lshl_b32 s99, s99, 1'); k(f's_add_u32 s99, s99, {s(sS)}')
k('s_lshr_b32 s98, s98, 3')
k('s_mul_i32 s101, s101, s99'); k('s_add_u32 s100, s100, s101')
k('s_mov_b32 s101, -1')
k('s_movk_i32 s3, 1024')
k.label('L_job_go')
k('s_lshl_b32 s97, s98, 12'); k('s_add_u32 s100, s100, s97')
k('s_mul_i32 s97, s98, s3'); k('s_lshl_b32 s97, s97, 6')
k('s_lshl_b32 s99, s99, 6'); k('s_add_u32 s97, s97, s99')
k('v_mul_lo_u32 v75, s3, v65'); k('v_add_u32 v75, v75, v74')
k('s_lshl_b32 s3, s3, 4'); k('s_sub_u32 s3, s3, 1024')
for g in wq_dma(): emit(g())
for g in wkv_dma(): emit(g)
k(f's_lshl_b32 s98, {s(sW)}, 12'); k(f's_add_u32 m0, s98, {L_RP}')
for i in range(4):
    k(f'buffer_load_dwordx4 v75, {s(SRC,4)}, s97 offen offset:{i*1024} lds')
    if i < 3: k('s_add_u32 s97, s97, s3')
k('s_waitcnt lgkmcnt(0)')
k(f's_and_b32 {s(sEP)}, {s(sEP)}, -8')
k(f's_add_u32 {s(sEP)}, {s(sEP)}, 8')
k('s_getreg_b32 s97, hwreg(HW_REG_XCC_ID)')
k('s_and_b32 s97, s97, 7')
k(f's_mov_b32 {s(sFV)}, s97')
k(f's_or_b32 s97, s97, {s(sEP)}')
k(f'v_mov_b32 {v(vEPO)}, s97')
k(f's_lshl_b32 {s(sKFL)}, {s(sTEAM)}, 5')
k(f's_lshl_b32 s97, {s(sJ)}, 2')
k(f's_add_u32 {s(sKFL)}, {s(sKFL)}, s97')
k(f's_cmp_lg_u32 {s(sW)}, 0')
k('s_cbranch_scc1 L_pdone')
k(f's_add_u32 s97, {s(sKFL)}, {PFLAG}')
emit(flag_store(97, 0, 'sc1'))
k.label('L_pdone')
k(f's_mov_b32 {s(sTO)}, 0x40000')
k(f's_mov_b32 {s(sONE)}, 0x3f803f80')
k(f's_mov_b32 {s(sFAST)}, 0')
k(f's_mov_b32 {s(sL)}, 0')
k(f's_sub_u32 {s(sKHM)}, 0, {s(sKH)}')
k(f's_mov_b32 {s(sKHM+1)}, {s(sKHM)}')
k(f's_mul_i32 {s(sTFL)}, {s(sTEAM)}, {2*NPH*128}')
k(f's_add_u32 {s(sTFL)}, {s(sTFL)}, {TFLAG}')
k(f's_lshl_b32 s97, {s(sJ)}, 4'); k(f's_lshl_b32 s98, {s(sW)}, 2')
k(f's_add_u32 {s(sMYF)}, {s(sTFL)}, s97'); k(f's_add_u32 {s(sMYF)}, {s(sMYF)}, s98')
k(f's_lshl_b32 s97, {s(sW)}, 3'); k(f's_lshl_b32 {s(sMASK)}, 0xff, s97')
k(f's_lshl_b32 s97, {s(sJ)}, 2'); k('s_lshl_b32 s97, 15, s97')
k(f's_or_b32 {s(sMASK)}, {s(sMASK)}, s97'); k(f's_mov_b32 {s(sMASK+1)}, 0')
k(f's_lshl_b32 s97, {s(sKH)}, 15'); k('s_add_u32 s97, s97, s96'); k(f's_add_u32 s97, s97, {XP}')
k(f's_lshl_b32 s98, {s(sJ)}, 12'); k(f's_lshl_b32 s99, {s(sS)}, 11'); k('s_add_u32 s98, s98, s99')
k(f's_add_u32 {s(sXP)}, s97, s98')
k(f's_lshl_b32 s98, {s(sW)}, 13')
k(f's_add_u32 {s(sXB)}, s97, s98')
k(f's_xor_b32 {s(sXA)}, {s(sXB)}, 0x8000')
k('s_lshr_b32 s97, s96, 3'); k(f's_add_u32 s97, s97, {ST}')
k(f's_lshl_b32 s98, {s(sKH)}, 9'); k(f's_add_u32 {s(sSTQ)}, s97, s98')
k(f's_lshl_b32 s98, {s(sJ)}, 10'); k(f's_lshl_b32 s99, {s(sS)}, 3'); k('s_add_u32 s98, s98, s99')
k(f's_add_u32 {s(sSTP)}, {s(sSTQ)}, s98')
k(f's_lshr_b32 s97, {s(sTEAM)}, 2'); k('s_lshl_b32 s98, s97, 14'); k(f's_lshl_b32 s99, {s(sW)}, 12')
k('s_add_u32 s98, s98, s99'); k(f's_add_u32 {s(sKVB)}, s98, {KVG}')
k(f's_mov_b32 {s(sGFL)}, {GFLAG}')
k(f's_lshr_b32 s97, {s(sTEAM)}, 1'); k('s_lshl_b32 s97, s97, 13')
k(f's_and_b32 s98, {s(sTEAM)}, 1'); k('s_lshl_b32 s98, s98, 11'); k('s_add_u32 s97, s97, s98')
k(f's_lshr_b32 s98, {s(sJ)}, 2'); k('s_lshl_b32 s98, s98, 10'); k('s_add_u32 s97, s97, s98')
k(f's_add_u32 {s(sKVS)}, s97, {KVG}')
k(f's_lshl_b32 s97, {s(sJ)}, 1'); k(f's_add_u32 s97, s97, {s(sS)}'); k('s_xor_b32 s98, s97, 1')
k(f's_lshl_b32 s99, {s(sW)}, 13'); k(f's_add_u32 s99, s99, {WOP}')
k(f's_lshl_b32 {s(sWO)}, s98, 15'); k(f's_add_u32 {s(sWO)}, {s(sWO)}, s99')
k(f's_lshl_b32 {s(sWO+1)}, s97, 15'); k(f's_add_u32 {s(sWO+1)}, {s(sWO+1)}, s99')
k(f's_mul_i32 s99, {s(sW)}, {28*1024}'); k(f's_add_u32 s99, s99, {W2P}')
k(f's_mul_i32 {s(sW2)}, s98, {112*1024}'); k(f's_add_u32 {s(sW2)}, {s(sW2)}, s99')
k(f's_mul_i32 {s(sW2+1)}, s97, {112*1024}'); k(f's_add_u32 {s(sW2+1)}, {s(sW2+1)}, s99')
k(f's_mul_i32 s97, {s(sJ)}, 7'); k(f's_add_u32 s97, s97, {s(sW)}')
k(f's_mul_i32 {s(sW1)}, s97, {33*1024}'); k(f's_add_u32 {s(sW1)}, {s(sW1)}, {W1P}')
k(f's_add_u32 {s(sW1+5)}, {s(sW1)}, {4*33*1024}')
k(f's_mul_i32 s98, {s(sTEAM)}, {224*1024}'); k(f's_add_u32 s98, s98, {HH}')
k('s_lshl_b32 s97, s97, 11'); k(f's_add_u32 {s(sHP)}, s98, s97')
k(f's_add_u32 {s(sHP+1)}, {s(sHP)}, {4*2048}')
k(f's_mul_i32 s97, {s(sW)}, {28*1024}'); k(f's_add_u32 {s(sHL)}, s98, s97')
k(f's_cmp_eq_u32 {s(sW)}, 3')
k(f's_cselect_b32 {s(sW1+5)}, {OOB}, {s(sW1+5)}')
k(f's_cselect_b32 {s(sHP+1)}, {OOB}, {s(sHP+1)}')
for st in range(2):
    for i in range(1, 5): k(f's_add_u32 {s(sW1+5*st+i)}, {s(sW1+5*st+i-1)}, 8192')
k(f'v_lshlrev_b32 {v(vFLG)}, 2, v3')
k(f'v_lshlrev_b32 {v(vSW)}, 4, v3')
k(f'v_lshl_add_u32 {v(vSW)}, v7, 2, {v(vSW)}')
k(f'v_add_u32 {v(vL16b)}, 4096, {v(vL16)}')
k(f's_mul_i32 s97, {s(sW)}, {12*1024}'); k(f's_add_u32 s97, s97, {L_RED}')
k(f'v_add_u32 {v(vRR)}, s97, {v(vL16)}')
for d in (1, 2, 3):
    k(f's_xor_b32 s97, {s(sW)}, {d}'); k(f's_mul_i32 s97, s97, {12*1024}'); k(f's_add_u32 s97, s97, {L_RED + (d-1)*4096}')
    k(f'v_add_u32 {v(vRW+d-1)}, s97, {v(vL16)}')
k(f'v_and_b32 v76, 12, {v(vLANE)}'); k('v_lshlrev_b32 v76, 4, v76')
k(f'v_and_b32 v77, 16, {v(vLANE)}'); k('v_lshl_add_u32 v76, v77, 1, v76')
k('v_lshrrev_b32 v77, 1, v74'); k('v_add_u32 v76, v76, v77')
k(f's_lshl_b32 s97, {s(sW)}, 14'); k(f's_add_u32 s97, s97, {L_WQ}')
k(f'v_lshl_add_u32 {v(vTR)}, v7, 9, v76'); k(f'v_add_u32 {v(vTR)}, s97, {v(vTR)}')
k('s_cmp_eq_u32 s101, -1')
k('s_cselect_b32 s97, 8, 9'); k('s_cselect_b32 s98, 256, 0'); k('s_add_u32 s98, s98, 256')
k('v_lshlrev_b32 v77, s97, v7'); k('v_add_u32 v76, v76, v77')
k(f's_lshl_b32 s97, {s(sW)}, 12'); k(f's_add_u32 s97, s97, {L_RP}')
k('v_add_u32 v100, s97, v76'); k('v_add_u32 v101, s98, v100')
k(f'v_and_b32 v76, 11, {v(vLANE)}'); k('v_cmp_eq_u32 vcc, 0, v76')
k(f'v_mov_b32 v77, {s(sONE)}')
for i in range(4): k(f'v_cndmask_b32 {v(80+i)}, 0, v77, vcc')
k(f's_lshl_b32 s97, {s(sW)}, 10'); k(f's_add_u32 s97, s97, {L_ONES}')
k(f'v_add_u32 v76, s97, {v(vL16)}')
k('ds_write_b128 v76, v[80:83]')
k('s_waitcnt vmcnt(20)')
for q in range(4):
    for i in range(2):
        k(f'v_lshlrev_b32 {v(vXR+4*q+2*i)}, 16, {v(66+2*q+i)}')
        k(f'v_and_b32 {v(vXR+4*q+2*i+1)}, 0xffff0000, {v(66+2*q+i)}')
stamp(1)
if STAMP: k(f's_mov_b32 {s(sSTI)}, 2')
k.settle(4)
k.label('L_layer')
publish_x(0)
stamp(0)
k(poll_issue(vTMP, sTFL, 0, 'p0'))
for i in range(16):
    k(f'ds_read_b64_tr_b16 {v(WF+4*i,2)}, {v(vTR)} offset:{i*1024}')
    k(f'ds_read_b64_tr_b16 {v(WF+4*i+2,2)}, {v(vTR)} offset:{i*1024+256}')
    if i % 4 == 3: k('s_waitcnt lgkmcnt(6)')
k(f's_cmp_eq_u32 {s(sKVW)}, 0')
k('s_cbranch_scc1 L_nokvw')
k(f'v_and_b32 v64, 15, {v(vLANE)}'); k(f'v_lshrrev_b32 v65, 4, {v(vLANE)}')
k('v_lshlrev_b32 v66, 3, v64'); k('v_lshl_add_u32 v66, v65, 8, v66'); k(f'v_add_u32 v66, {L_WKV}, v66')
for f in range(16):
    k(f'ds_read_b64_tr_b16 {a(4*f,2)}, v66 offset:{f*1024}')
    k(f'ds_read_b64_tr_b16 {a(4*f+2,2)}, v66 offset:{f*1024+128}')
    if f % 4 == 3: k('s_waitcnt lgkmcnt(6)')
k(f's_cmp_lg_u32 {s(sL)}, 0')
k('s_cbranch_scc1 L_nokvw')
for f in range(16):
    k(f'ds_read_b64_tr_b16 {v(XF+4*f,2)}, v66 offset:{f*1024}')
    k(f'ds_read_b64_tr_b16 {v(XF+4*f+2,2)}, v66 offset:{f*1024+128}')
    if f % 4 == 3: k('s_waitcnt lgkmcnt(6)')
k('s_waitcnt lgkmcnt(0)')
for i in range(64):
    k(f'v_dot2_f32_bf16 {v(66+(i&1))}, {v(XF+i)}, {s(sONE)}, {"0" if i<2 else v(66+(i&1))}')
k('v_add_f32 v66, v66, v67')
k('v_cvt_pk_bf16_f32 v67, v66, v66'); k('v_lshlrev_b32 v67, 16, v67'); k('v_sub_f32 v67, v66, v67')
k(f'v_cvt_pk_bf16_f32 {v(vCSKV)}, v66, v67')
k.label('L_nokvw')
k(f's_cmp_lg_u32 {s(sL)}, 0')
k('s_cbranch_scc1 L_l0skip')
for i in range(4):
    k(f'ds_read_b64_tr_b16 {v(80+4*i,2)}, v100 offset:{i*1024}')
    k(f'ds_read_b64_tr_b16 {v(80+4*i+2,2)}, v101 offset:{i*1024}')
k('s_waitcnt lgkmcnt(8)')
for i in range(32):
    for nn in range(2):
        r = WF + 8*(i>>2) + 4*nn + (i&3)
        k(f'v_dot2_f32_bf16 {v(66+nn)}, {v(r)}, {s(sONE)}, {"0" if i==0 else v(66+nn)}')
k('s_waitcnt lgkmcnt(0)')
for i in range(4):
    k(f'buffer_store_dwordx4 {v(80+4*i,4)}, {v(vL16)}, {s(SWS,4)}, s100 offen offset:{i*1024} sc1')
for nn in range(2):
    k(f'v_cvt_pk_bf16_f32 v68, {v(66+nn)}, {v(66+nn)}'); k('v_lshlrev_b32 v68, 16, v68'); k(f'v_sub_f32 v68, {v(66+nn)}, v68')
    k(f'v_cvt_pk_bf16_f32 {v(66+nn)}, {v(66+nn)}, v68')
k(f's_lshl_b32 s97, {s(sS)}, 10'); k(f's_lshl_b32 s98, {s(sW)}, 2'); k('s_add_u32 s97, s97, s98'); k(f's_add_u32 s97, s97, {L_CS}')
k(f'v_add_u32 v68, s97, {v(vL16)}'); k('v_xor_b32 v69, 1024, v68')
k('ds_write_b32 v69, v66'); k('ds_write_b32 v68, v67')
k('s_cmp_eq_u32 s101, -1')
k('s_cbranch_scc1 L_l0skip')
for i in range(16):
    k(f'v_dot2_f32_bf16 v70, {v(80+i)}, {s(sONE)}, {"0" if i==0 else "v70"}')
k('v_mov_b32 v71, v70')
k('v_permlane32_swap_b32 v70, v71')
k('v_add_f32 v70, v70, v71')
k('v_cvt_pk_bf16_f32 v71, v70, v70'); k('v_lshlrev_b32 v71, 16, v71'); k('v_sub_f32 v71, v70, v71')
k('v_cvt_pk_bf16_f32 v70, v70, v71')
k(f'v_lshlrev_b32 v71, 2, {v(vFLG)}')
k(f'buffer_store_dword v70, v71, {s(SWS,4)}, s101 offen sc1')
k.label('L_l0skip')
k('s_waitcnt lgkmcnt(0)')
emit(poll_check(vTMP, sTFL, 0, 'p0', None))
stamp(1)
SR = [172, 176, 244, 248]
k(f'v_lshrrev_b32 v7, 5, {v(vLANE)}'); k(f'v_lshlrev_b32 v3, 2, {v(vFLG)}'); k('v_lshl_add_u32 v3, v7, 12, v3')
for i in range(4):
    vm.issue('st')
    k(f'buffer_load_dwordx4 {v(SR[i],4)}, v3, {s(SWS,4)}, {s(sSTQ)} offen offset:{i*1024} sc1')
k(f's_cmp_eq_u32 {s(sKVW)}, 0')
k('s_cbranch_scc1 L_nox16')
k('v_lshrrev_b32 v66, 1, v65'); k('v_and_b32 v67, 1, v65')
k(f's_lshr_b32 s97, {s(sJ)}, 1'); k('s_and_b32 s97, s97, 1')
k('s_lshl_b32 s98, s97, 8')
k('v_lshl_add_u32 v70, v64, 4, s98'); k('v_lshl_add_u32 v70, v65, 9, v70')
k(f's_and_b32 s98, {s(sXB)}, {0xffffffff ^ 0x7fff}')
for f in range(16):
    k(f'buffer_load_dwordx4 {a(64+4*f,4)}, v70, {s(SWS,4)}, s98 offen offset:{(f&1)*2048} sc1')
    if f & 1 and f < 15: k('s_add_u32 s98, s98, 4096')
k.label('L_nox16')
x_loads(sXA, sXB, 'x')
k(f's_and_b32 s99, {s(sKFL)}, -128'); k(f's_add_u32 s99, s99, {PFLAG}')
k(poll_issue(vTM2, 99, 0, 'pp'))
k(vm.wait('st'))
k(f'v_pk_add_f32 {v(SR[0],2)}, {v(SR[0],2)}, {v(SR[0]+2,2)}'); k(f'v_pk_add_f32 {v(SR[1],2)}, {v(SR[1],2)}, {v(SR[1]+2,2)}')
k(f'v_pk_add_f32 {v(SR[2],2)}, {v(SR[2],2)}, {v(SR[2]+2,2)}'); k(f'v_pk_add_f32 {v(SR[3],2)}, {v(SR[3],2)}, {v(SR[3]+2,2)}')
k(f'v_pk_add_f32 {v(SR[0],2)}, {v(SR[0],2)}, {v(SR[1],2)}'); k(f'v_pk_add_f32 {v(SR[2],2)}, {v(SR[2],2)}, {v(SR[3],2)}')
k(f'v_pk_add_f32 {v(SR[0],2)}, {v(SR[0],2)}, {v(SR[2],2)}')
k(f'v_mov_b32 {v(SR[1])}, {v(SR[0])}'); k(f'v_mov_b32 {v(SR[1]+1)}, {v(SR[0]+1)}')
k(f'v_permlane32_swap_b32 {v(SR[0])}, {v(SR[1])}'); k(f'v_permlane32_swap_b32 {v(SR[0]+1)}, {v(SR[1]+1)}')
k(f'v_pk_add_f32 {v(SR[0],2)}, {v(SR[0],2)}, {v(SR[1],2)}')
emit(finish_stats(SR[0], vRK, vM0))
for i in range(1, 4): k(f'v_mov_b32 {v(vM0+i)}, {v(vM0)}')
k(f's_cmp_eq_u32 {s(sKVW)}, 0')
k('s_cbranch_scc1 L_qplain')
k('s_lshl_b32 s98, s97, 6')
k('v_lshl_add_u32 v68, v64, 2, s98'); k('v_lshl_add_u32 v69, v65, 4, s98')
k(f'ds_bpermute_b32 v72, v68, {v(vM0)}')
k(f'ds_bpermute_b32 v76, v68, {v(vRK)}')
for r in range(4): k(f'ds_bpermute_b32 {v(80+r)}, v69, {v(vRK)} offset:{4*r}')
k(f'v_mov_b32 v88, {v(vCSKV)}')
for i in range(1, 4): k(f'v_mov_b32 {v(88+i)}, 0'); k(f'v_mov_b32 {v(72+i)}, 0')
k(f's_bitcmp1_b32 {s(sJ)}, 0')
k('s_cbranch_scc1 L_kv_v')
for f in range(16):
    k(f'v_mfma_f32_16x16x32_bf16 v[84:87], {a(4*f,4)}, {a(64+4*f,4)}, {"0" if f==0 else "v[84:87]"}')
k('s_waitcnt lgkmcnt(0)')
k('v_mfma_f32_16x16x32_bf16 v[84:87], v[88:91], v[72:75], v[84:87]')
k('s_lshl_b32 s98, s97, 8')
k('v_lshl_add_u32 v71, v64, 4, s98'); k('v_lshl_add_u32 v71, v67, 9, v71'); k('v_lshl_add_u32 v71, v66, 3, v71')
for r in range(4): k(f'v_mul_f32 {v(84+r)}, v76, {v(84+r)}')
k('s_branch L_kv_st')
k.label('L_kv_v')
k.settle(2)
for f in range(16):
    k(f'v_mfma_f32_16x16x32_bf16 v[84:87], {a(64+4*f,4)}, {a(4*f,4)}, {"0" if f==0 else "v[84:87]"}')
k('s_waitcnt lgkmcnt(0)')
k('v_mfma_f32_16x16x32_bf16 v[84:87], v[72:75], v[88:91], v[84:87]')
k('s_lshl_b32 s98, s97, 9'); k('s_add_u32 s98, s98, 4096')
k('v_lshl_add_u32 v71, v64, 4, s98'); k('v_lshl_add_u32 v71, v66, 8, v71'); k('v_lshl_add_u32 v71, v67, 3, v71')
for r in range(4): k(f'v_mul_f32 {v(84+r)}, {v(80+r)}, {v(84+r)}')
k.label('L_kv_st')
k(f'v_cvt_pk_bf16_f32 {v(vFL)}, v84, v85')
k(f'v_cvt_pk_bf16_f32 {v(vFL+1)}, v86, v87')
k(f'v_mov_b32 {v(vFL+2)}, v71')
k(f's_add_u32 s98, {s(sKVS)}, {KVL-KVG}')
k(f's_add_u32 s97, {s(sKFL)}, {s(sGFL)}')
k('s_waitcnt vmcnt(0)')
k(f'buffer_store_dwordx2 {v(vFL,2)}, {v(vFL+2)}, {s(SWS,4)}, s98 offen')
k(f'buffer_store_dwordx2 {v(vFL,2)}, {v(vFL+2)}, {s(SWS,4)}, {s(sKVS)} offen sc1')
n0 = vm.n
gemm4('x', waits=False, hook_mid=['s_waitcnt vmcnt(1)'] + flag_store(97, LFLAG-GFLAG, ''))
k('s_waitcnt vmcnt(1)')
emit(flag_store(97, 0, 'sc1'))
vm.n = n0
k('s_branch L_qjoin')
k.label('L_qplain')
k.settle(2)
gemm4('x')
k('s_waitcnt vmcnt(0)')
k.label('L_qjoin')
k(f'v_cmp_ne_u32 vcc, {v(vEPO)}, {v(vTM2)}')
k(f's_lshl_b32 s97, {s(sS)}, 10'); k(f's_add_u32 s97, s97, {L_CS}'); k(f'v_add_u32 v3, s97, {v(vL16)}')
k('s_cmp_eq_u64 vcc, 0')
k(f's_cselect_b32 s98, {KVL-KVG}, 0'); k(f's_cselect_b32 s99, {LFLAG-GFLAG}, 0')
if FORCE_SLOW: k('s_mov_b32 s98, 0'); k('s_mov_b32 s99, 0')
k(f's_add_u32 s98, s98, {s(sKVB)}')
k(f's_and_b32 s97, {s(sKFL)}, -128'); k('s_add_u32 s99, s99, s97'); k(f's_add_u32 s99, s99, {s(sGFL)}')
k('s_waitcnt lgkmcnt(0)')
k('s_barrier')
T3 = ACC + 48
k(f'ds_read_b128 {v(vFL,4)}, v3')
emit(red_read(XF))
k(f's_cmp_eq_u32 {s(sS)}, 0')
k('s_cbranch_scc1 L_noa0')
k(poll_issue(vTMP, 99, 0, 'pa'))
k.label('L_noa0')
k(f's_cmp_eq_u32 {s(sKVW)}, 0')
k('s_cbranch_scc1 L_nor')
k(f's_add_u32 s97, {s(sKFL)}, {RFLAG}')
n0 = vm.n; emit(flag_store(97, 0, 'sc1')); vm.n = n0
k.label('L_nor')
k('s_waitcnt lgkmcnt(12)')
k(mfma(T3, v(vFL,4), v(vM0,4)))
k(f'v_mul_f32 {v(vRK)}, 0x3eb8aa3b, {v(vRK)}')
k('s_waitcnt lgkmcnt(4)')
for i in range(8): k(f'v_pk_add_f32 {v(XF+2*i,2)}, {v(XF+2*i,2)}, {v(XF+16+2*i,2)}')
k('s_waitcnt lgkmcnt(0)')
for i in range(8): k(f'v_pk_add_f32 {v(XF+2*i,2)}, {v(XF+2*i,2)}, {v(XF+32+2*i,2)}')
for i in range(8): k(f'v_pk_add_f32 {v(XF+2*i,2)}, {v(XF+2*i,2)}, {v(T3+2*i,2)}')
for i in range(8): k(f'v_pk_mul_f32 {v(XF+2*i,2)}, {v(XF+2*i,2)}, {v(vRK,2)} op_sel_hi:[1,0]')
emit(pack_tile(XF, QA))
stamp(2)
k(f's_cmp_eq_u32 {s(sS)}, 0')
k('s_cbranch_scc1 L_noa')
k(f's_lshl_b32 m0, {s(sW)}, 12')
emit(poll_check(vTMP, 99, 0, 'pa', None))
k(f'v_cmp_ne_u32 vcc, {s(sFV)}, {v(vTMP)}')
for i in range(4):
    k(f'buffer_load_dwordx4 {v(vL16)}, {s(SWS,4)}, s98 offen offset:{i*1024} sc1 lds')
k('s_sub_u32 m0, m0, 4096'); k('s_sub_u32 s98, s98, 4096')
for i in range(4):
    k(f'buffer_load_dwordx4 {v(vL16)}, {s(SWS,4)}, s98 offen offset:{i*1024} sc1 lds')
k(f's_and_b32 s97, {s(sTEAM)}, 3'); k('s_lshl_b32 s97, s97, 3'); k('s_lshr_b32 s97, vcc_lo, s97')
k('s_and_b32 s97, s97, 0xff'); k('s_cselect_b32 s97, 0, 1')
if FORCE_SLOW: k('s_mov_b32 s97, 0')
k('v_mov_b32 v3, s97'); k(f'v_mov_b32 v7, {L_FW}')
k('ds_write_b32 v7, v3')
k.label('L_noa')
stamp(3)
k(f'v_mov_b32 {v(vIDX)}, 0xdddd')
k(f'v_and_b32 v64, 15, {v(vLANE)}'); k(f'v_lshrrev_b32 v65, 5, {v(vLANE)}')
k('v_lshlrev_b32 v64, 4, v64'); k('v_lshl_add_u32 v64, v65, 8, v64')
k(f'v_and_b32 v65, 16, {v(vLANE)}'); k('v_cmp_eq_u32 vcc, 0, v65')
k(f'v_mov_b32 v66, {L_ONES}'); k('v_mov_b32 v67, 4096'); k('v_cndmask_b32 v66, v66, v67, vcc')
k(f'v_add_u32 {v(vVA0)}, v64, v66')
k('v_mov_b32 v67, 8192'); k(f'v_cndmask_b32 {v(vVI)}, 0, v67, vcc')
k(f'v_mov_b32 {v(vVA)}, {v(vVA0)}')
k(f'v_mov_b32 {v(vKA)}, {v(vL16)}')
for i in range(32): k(f'v_mov_b32 {v(OA+i)}, 0')
k(f's_mov_b32 {s(sRETRY)}, 0')
k(f's_mov_b32 s96, {RFLAG}')
k(f's_lshl_b32 s95, {s(sW)}, 12')
k(f'v_mov_b32 v7, {L_FW}')
k(f's_cmp_eq_u32 {s(sS)}, 0')
k('s_cbranch_scc1 L_noa2')
k('s_waitcnt vmcnt(0) lgkmcnt(0)')
k.label('L_noa2')
k('s_barrier')
stamp(4)
k(f'ds_read_b128 {v(KB,4)}, {v(vKA)}')
k(f'ds_read_b128 {v(KB+4,4)}, {v(vKA)} offset:1024')
k(f'ds_read_b128 {v(VLO,4)}, {v(vVA)}')
k(f'ds_read_b128 {v(VHI,4)}, {v(vVA)} offset:512')
k(f'ds_read_b32 {v(vFW)}, v7')
k(poll4_issue(sGFL, 'pg'))
k('s_waitcnt lgkmcnt(4)')
k(mfma(S0, v(KB,4), v(QA,4), '0'))
k(mfma(S1, v(KB,4), v(QB,4), '0'))
def rowmax(M, S, first):
    L = []
    for i in range(8):
        if first and i == 0: L.append(f'v_max_f32 {v(M)}, {v(S)}, {v(S+1)}')
        else: L.append(f'v_max3_f32 {v(M)}, {v(M)}, {v(S+2*i)}, {v(S+2*i+1)}')
    return L
def cinit():
    k(f'v_mov_b32 v3, {v(vMA)}'); k(f'v_mov_b32 v7, {v(vMB)}')
    k(f'v_permlane32_swap_b32 v3, {v(vMA)}'); k(f'v_permlane32_swap_b32 v7, {v(vMB)}')
    k(f'v_max_f32 v3, v3, {v(vMA)}'); k(f'v_max_f32 v7, v7, {v(vMB)}')
    for i in range(16): k(f'v_sub_f32 {v(CA+i)}, 0, v3')
    k('s_waitcnt lgkmcnt(0)')
    k(mfma(S0, v(KB,4), v(QA,4), v(CA,16)))
    for i in range(16): k(f'v_sub_f32 {v(CB+i)}, 0, v7')
emit(rowmax(vMA, S0, True)); emit(rowmax(vMB, S1, True))
cinit()

def att_tile(t, first, last, koff, voff, vadd, kadd, hooks):
    L = []
    b = 4*(t & 1); nb = 4*((t+1) & 1)
    ex = lambda S, i: L.append(f'v_exp_f32 {v(S+i)}, {v(S+i)}')
    smf = lambda O, A, B: L.append(f'v_smfmac_f32_32x32x32_bf16 {v(O,16)}, {v(A,4)}, {v(B,8)}, {v(vIDX)}')
    ex(S0,0); ex(S0,1)
    if not first: smf(OB, VHI+nb, S1+8)
    for i in range(2,6): ex(S0,i)
    L.append(mfma(S1, v(KB+b,4), v(QB,4), v(CB,16)))
    L += hooks.get(0, [])
    if kadd and kadd[0] == 'pre': L.append(kadd[1])
    if koff is not None: L.append(f'ds_read_b128 {v(KB+b,4)}, {v(vKA)} offset:{koff}')
    if kadd and kadd[0] == 'post': L.append(kadd[1])
    if vadd: L.append(f'v_add_u32 {v(vVA)}, {v(vVI)}, {v(vVA)}')
    ex(S0,6); ex(S0,7)
    if voff is not None: L.append(f'ds_read_b128 {v(VLO+nb,4)}, {v(vVA)} offset:{voff}')
    ex(S0,8); ex(S0,9)
    smf(OA, VLO+b, S0)
    if voff is not None: L.append(f'ds_read_b128 {v(VHI+nb,4)}, {v(vVA)} offset:{voff+512}')
    for i in range(10,13): ex(S0,i)
    L += hooks.get(1, [])
    for i in range(13,16): ex(S0,i)
    ex(S1,0); ex(S1,1)
    smf(OA, VHI+b, S0+8)
    for i in range(2,6): ex(S1,i)
    if not last: L.append(mfma(S0, v(KB+nb,4), v(QA,4), v(CA,16)))
    ex(S1,6); ex(S1,7)
    L += hooks.get(2, [])
    ex(S1,8); ex(S1,9)
    smf(OB, VLO+b, S1)
    L.append('s_waitcnt lgkmcnt(0)')
    ex(S1,10); ex(S1,11); ex(S1,12)
    L += hooks.get(3, [])
    for i in range(13,16): ex(S1,i)
    return L

def isize(t):
    if t.endswith(':'): return 0
    I = Ins(t); mn = I.mn
    if I.is_mfma or I.is_ds or I.is_vmem or mn.endswith('_e64'): return 8
    lit = False
    for o in I.ops:
        try:
            x = int(o, 0); lit = lit or not (-16 <= x <= 64)
        except ValueError: pass
    if mn.startswith(('s_waitcnt', 's_barrier', 's_nop', 's_cbranch', 's_branch', 's_movk', 's_setpc')): return 4
    if mn in ('v_or3_b32', 'v_max3_f32', 'v_fma_f32', 'v_lshl_add_u32', 'v_cvt_pk_bf16_f32'): return 8
    return 8 if lit else 4
def align8(L):
    pos = 0; lastexp = None
    for i, t in enumerate(L):
        z = isize(t)
        if z == 8:
            if pos % 8 and lastexp is not None:
                L[lastexp] = L[lastexp].replace('v_exp_f32 ', 'v_exp_f32_e64 '); pos += 4
            lastexp = None
        elif t.startswith('v_exp_f32 '): lastexp = i
        pos += z
    return L

HK = {}
def hook(t, slot, L): HK.setdefault(t, {}).setdefault(slot, []).extend(L)
GC = opt('gc', 1)
hook(GC, 3, poll4_check(sGFL, 'pg'))
pos = [(t, sl) for t in range(64) for sl in range(4)]
p = pos.index((GC+1, 0))
for i in range(1, 8):
    for f in range(4):
        L = []
        if f == 0: L = [f's_add_u32 m0, s95, {i*16384}', f's_xor_b32 s94, {s(sKVB)}, {i<<14}']
        vm.issue(f'kb{i}')
        L.append(f'buffer_load_dwordx4 {v(vL16)}, {s(SWS,4)}, s94 offen offset:{f*1024} sc1 lds')
        if pos[p] == (6, 0):
            hook(6, 0, ['@kb1', 's_barrier']); n6 = vm.n - 1
        hook(*pos[p], L); p += 1
if 'n6' not in globals() or not any('@kb1' in x for x in HK.get(6, {}).get(0, [])):
    hook(6, 0, [vm.wait('kb1'), 's_barrier'])
else:
    HK[6][0][HK[6][0].index('@kb1')] = f's_waitcnt vmcnt({n6 - vm.tags["kb1"]})'
assert p <= pos.index((13, 0))
hook(13, 1, [poll4_issue(96, 'pr')])
hook(14, 0, [vm.wait('kb7'), 's_barrier'])
hook(15, 1, poll4_check(96, 'pr'))
pf = []
for ks in range(8):
    for nn in range(2): pf.append((v(WF+8*ks+4*nn,4), sWO+nn, ks))
for st in range(2):
    for i in range(32): pf.append((a(128*st+4*i,4), sW1+5*st+i//8, i%8))
    pf.append((v(CS1+4*st,4), sW1+5*st+4, 0))
PF0 = 16
slots = [(t, sl) for t in range(PF0, 62) for sl in (1, 3)]
assert len(slots) >= len(pf)
for x, sl in zip(pf, slots): hook(*sl, [ld(*x, tag='pf')])
AL = []
for t in range(64):
    t2 = t + 2
    koff = ((t2 >> 2) & 7)*8192 + (t2 & 3)*1024 if t2 < 64 else None
    kadd = ('pre', f'v_add_u32 {v(vKA)}, 0x10000, {v(vKA)}') if t2 == 32 else None
    voff = ((t+1) & 3)*1024 if t < 63 else None
    AL += att_tile(t, t == 0, t == 63, koff, voff, (t & 3) == 3 and t < 63, kadd, HK.get(t, {}))
k.raw('.p2align 3')
nb4 = k.nops_inserted
emit(align8(AL))
print('nops in attention:', k.nops_inserted - nb4, file=sys.stderr)
k.label('L_att_fin')
k(f'v_smfmac_f32_32x32x32_bf16 {v(OB,16)}, {v(VHI+4,4)}, {v(S1+8,8)}, {v(vIDX)}')
stamp(5)
k(f'v_readfirstlane_b32 {s(sFAST)}, {v(vFW)}')
k(f'v_rcp_f32 {v(S0)}, {v(OA+8)}')
k(f's_add_u32 s97, {s(sXP)}, {OQ-XP}')
for i in range(8): k(f'v_mul_f32 {v(OA+i)}, {v(S0)}, {v(OA+i)}')
for i in range(4): k(f'v_cvt_pk_bf16_f32 {v(S0+4+i)}, {v(OA+2*i)}, {v(OA+2*i+1)}')
k(f'v_rcp_f32 {v(S0+1)}, {v(OB+8)}')
for i in range(8): k(f'v_mul_f32 {v(OB+i)}, {v(S0+1)}, {v(OB+i)}')
for i in range(4): k(f'v_cvt_pk_bf16_f32 {v(S0+8+i)}, {v(OB+2*i)}, {v(OB+2*i+1)}')
emit(two_ways(lambda fl: [st4(S0+4, 97, 0, fl), st4(S0+8, 97, 1024, fl)]))
k(f'v_mul_f32 {v(S0+2)}, 0x5f800000, {v(OA+8)}')
k(f'v_mul_f32 {v(S0+3)}, 0x5f800000, {v(OB+8)}')
k(f'v_mul_f32 {v(S0+2)}, 0, {v(S0+2)}')
k(f'v_fma_f32 {v(S0+2)}, {v(S0+3)}, 0, {v(S0+2)}')
for i in range(8):
    k(f'v_fma_f32 {v(S0+2)}, {v(OA+i)}, 0, {v(S0+2)}')
    k(f'v_fma_f32 {v(S0+2)}, {v(OB+i)}, 0, {v(S0+2)}')
k(f'v_cmp_u_f32 vcc, {v(S0+2)}, {v(S0+2)}')
if FORCE_RETRY: k('s_mov_b64 vcc, 1')
k('s_cbranch_vccnz L_att_retry')
k.label('L_att_ok')
k(f's_add_u32 s98, {s(sXA)}, {OQ-XP}'); k(f's_add_u32 s99, {s(sXB)}, {OQ-XP}')
k('s_waitcnt vmcnt(0)')
emit(two_ways(lambda fl: flag_store(sMYF, 128, fl)))
stamp(6)
k(poll_issue(vTMP, sTFL, 128, 'p1'))
emit(poll_check(vTMP, sTFL, 128, 'p1', sMASK))
stamp(7)
x_loads(98, 99, 'o')
k(f's_cmp_lg_u32 {s(sL)}, 0')
k('s_cbranch_scc1 L_o1')
n0 = vm.n
gemm4('o', cinit=v(vXR,16), fill=wq_dma())
k('s_branch L_o2')
k.label('L_o1')
vm.n = n0
gemm4('o', cinit=v(vXR,16))
k.label('L_o2')
k('s_waitcnt lgkmcnt(0)')
k('s_barrier')
emit(red_read(XF))
k('s_waitcnt lgkmcnt(4)')
for i in range(8): k(f'v_pk_add_f32 {v(XF+2*i,2)}, {v(XF+2*i,2)}, {v(XF+16+2*i,2)}')
k('s_waitcnt lgkmcnt(0)')
for i in range(8): k(f'v_pk_add_f32 {v(XF+2*i,2)}, {v(XF+2*i,2)}, {v(XF+32+2*i,2)}')
for i in range(8): k(f'v_pk_add_f32 {v(vXR+2*i,2)}, {v(XF+2*i,2)}, {v(T3+2*i,2)}')
stamp(8)
publish_x(2)
stamp(9)
k(poll_issue(vTMP, sTFL, 256, 'p2'))
k(f's_and_b32 s98, {s(sXB)}, {0xffffffff ^ 0x8000}')
k(f's_lshl_b32 s97, {s(sW)}, 13')
k(f's_and_b32 s99, {s(sSTQ)}, -1024'); k(f's_lshl_b32 s96, {s(sW)}, 11'); k('s_add_u32 s99, s99, s96')
k('s_mov_b32 m0, s97')
emit(poll_check(vTMP, sTFL, 256, 'p2', None))
stamp(10)
def dma1(sreg, off, tag=None):
    vm.issue(tag)
    return f'buffer_load_dwordx4 {v(vL16)}, {s(SWS,4)}, {s(sreg)} offen offset:{off} sc1 lds'
if STAMP: k('s_mov_b32 m0, s97')
for i in range(4): k(dma1(98, i*1024))
k('s_add_u32 m0, m0, 4096'); k('s_add_u32 s98, s98, 4096')
for i in range(4): k(dma1(98, i*1024))
k(f's_add_u32 m0, s96, {L_X1S}')
k(f's_add_u32 s98, s98, {32768-4096}')
for i in range(2): k(dma1(99, i*1024, 'xa'))
k(f's_add_u32 m0, s97, 32768')
for i in range(4): k(dma1(98, i*1024))
k('s_add_u32 m0, m0, 4096'); k('s_add_u32 s98, s98, 4096')
for i in range(4): k(dma1(98, i*1024, 'xb'))
U = [ACC+16*i for i in range(4)]
RING = 108; NR = 6; SIL = 132; W2A = 148
def w2frag(i, nn):
    return v(W2A + 8*i + 4*nn, 4) if i < 12 else a(8*(i-12) + 4*nn, 4)
def hfrag(m, i):
    return a(128 + 4*((28*m + i) % 32), 4)
k(f's_mov_b32 s92, {s(sW2)}'); k(f's_mov_b32 s93, {s(sW2+1)}')
def w2_load(i, nn):
    L = []
    if i and i % 8 == 0: L.append(f's_add_u32 s{92+nn}, s{92+nn}, 8192')
    return L + [ld(w2frag(i, nn), 92+nn, i % 8, f'w2_{i}_{nn}')]
def h_load(m, i):
    L = []
    if i == 0: L.append(f's_add_u32 s94, {s(sHL)}, {m*112*1024}')
    elif i % 8 == 0: L.append('s_add_u32 s94, s94, 8192')
    return L + [ld(hfrag(m, i), 94, i % 8, f'h{m}_{i}')]
def cost(t):
    if t.endswith(':'): return 0
    return 8 if t.startswith(('v_exp', 'v_rcp', 'v_rsq')) else 4
def silu_items(A, m, st):
    It = []
    R = vR0 + m
    for g in range(0, 16, 4):
        It += [[f'v_mul_f32 {v(SIL+i)}, {v(R)}, {v(A+i)}'] for i in range(g, g+4)]
        It += [[f'v_exp_f32 {v(SIL+i)}, {v(SIL+i)}'] for i in range(g, g+4)]
        It += [[f'v_add_f32 {v(SIL+i)}, 1.0, {v(SIL+i)}'] for i in range(g, g+4)]
        It += [[f'v_rcp_f32 {v(SIL+i)}, {v(SIL+i)}'] for i in range(g, g+4)]
        It += [[f'v_mul_f32 {v(SIL+i)}, {v(SIL+i)}, {v(A+i)}'] for i in range(g, g+4)]
        It += [[f'v_cvt_pk_bf16_f32 {v(A+i//2)}, {v(SIL+i)}, {v(SIL+i+1)}'] for i in range(g, g+4, 2)]
    return It
def h_store(A, m, st):
    def f(fl): return [st4(A, 95, 0, fl), st4(A+4, 95, 1024, fl, f'hs{m}{st}')]
    return lambda: [f's_add_u32 s95, {s(sHP+st)}, {m*112*1024}'] + two_ways(f)
def run(steps, queues, budget):
    for i, stp in enumerate(steps):
        used = stp()
        prog = True
        while prog and used < budget:
            prog = False
            for q in queues:
                if q and q[0][0] <= i and used < budget:
                    it = q.pop(0)[1]
                    if callable(it): it = it()
                    emit(it); used += sum(cost(x) for x in it); prog = True
    for q in queues:
        while q:
            it = q.pop(0)[1]
            if callable(it): it = it()
            emit(it)
seq = [(sg, i) for sg in range(4) for i in range(33)]
rd = [x for x in seq if x[1] < 32]
state = {'issued': 0, 'done': 0}
def issue_rd():
    n = state['issued']
    if n >= len(rd): return 0
    sg, i = rd[n]
    if sg == 2 and i == 0:
        k(vm.wait('xb')); k('s_barrier')
    k(f'ds_read_b128 {v(RING+4*(n%NR),4)}, {v(vL16)} offset:{(sg>>1)*32768 + i*1024}')
    state['issued'] += 1
    return 4
def up_step(sg, i):
    def f():
        st = sg & 1; m = sg >> 1
        if i < 32:
            n = state['done']; state['done'] += 1
            k(f's_waitcnt lgkmcnt({state["issued"] - n - 1})')
            k(mfma(U[sg], a(128*st+4*i,4), v(RING+4*(n%NR),4), '0' if i == 0 else None))
            return 4 + issue_rd()
        k(mfma(U[sg], v(CS1+4*st,4), v(vM0+4*m,4)))
        return 0
    return f
k(vm.wait('xa'))
k('s_barrier')
stamp(11)
TS = U[2]
k(f'v_add_u32 v3, {L_X1S}, {v(vL16)}')
for j in range(8): k(f'ds_read_b128 {v(TS+4*j,4)}, v3 offset:{j*1024}')
for _ in range(4): issue_rd()
SI = []
n = 16
while n > 1:
    n //= 2
    for i in range(n):
        SI += [[f'v_add_f32 {v(TS+2*i)}, {v(TS+4*i)}, {v(TS+4*i+2)}', f'v_add_f32 {v(TS+2*i+1)}, {v(TS+4*i+1)}, {v(TS+4*i+3)}']]
SI += [[x] for x in finish_stats(TS, vR1, vM1)]
SI += [[f'v_mov_b32 {v(vR0)}, {v(vR1)}', f'v_mov_b32 {v(vM0)}, {v(vM1)}'],
       [f'v_permlane32_swap_b32 {v(vR0)}, {v(vR1)}', f'v_permlane32_swap_b32 {v(vM0)}, {v(vM1)}'],
       [f'v_cndmask_b32 {v(vRK)}, {v(vR0)}, {v(vR1)}, {s(sKHM,2)}']]
SI += [[f'v_mov_b32 {v(vM0+i)}, {v(vM0)}', f'v_mov_b32 {v(vM1+i)}, {v(vM1)}'] for i in range(1, 4)]
SI += [[f'v_mul_f32 {v(vR0)}, 0xbfb8aa3b, {v(vR0)}', f'v_mul_f32 {v(vR1)}, 0xbfb8aa3b, {v(vR1)}']]
qV = [(1, x) for x in SI]
qV += [(35, x) for x in silu_items(U[0], 0, 0)] + [(35, h_store(U[0], 0, 0))]
qV += [(68, x) for x in silu_items(U[1], 0, 1)] + [(68, h_store(U[1], 0, 1))]
FL0 = opt('fl0', 110); PI0 = opt('pi0', 118); PC0 = opt('pc0', 130); HW = opt('hw', 10)
q3 = [(101, x) for x in silu_items(U[2], 1, 0)] + [(101, h_store(U[2], 1, 0))]
qV += q3
qM = []
for i in range(12):
    for nn in range(2): qM.append((2 + 5*i + 2*nn, (lambda i=i, nn=nn: w2_load(i, nn))))
for i in range(12, 28):
    for nn in range(2): qM.append((67 + opt('w2r', 2)*(2*(i-12) + nn), (lambda i=i, nn=nn: w2_load(i, nn))))
qM.append((FL0, lambda: [vm.wait('hs01')] + two_ways(lambda fl: flag_store(sMYF, 384, fl))))
qM.append((PI0, lambda: [poll_issue(vTMP, sTFL, 384, 'p3')]))
qM.append((PC0, lambda: poll_check(vTMP, sTFL, 384, 'p3', sMASK)))
qM.sort(key=lambda x: x[0])
for i in range(HW): qM.append((max(PC0, 99 + i + 1), (lambda i=i: h_load(0, i))))
run([up_step(*x) for x in seq], [qM, qV], opt('bud', 22))
stamp(12)
def dn_step(m, i, nn):
    def f():
        c = 0
        if nn == 0:
            k(vm.wait(f'h{m}_{i}')); c = 4
        k(mfma(U[2*m+nn], w2frag(i, nn), hfrag(m, i), '0' if i == 0 else None))
        return c
    return f
emit(sum(silu_items(U[3], 1, 1), [])); emit(h_store(U[3], 1, 1)())
FL1 = opt('fl1', 18); PI1 = opt('pi1', 24); PC1 = opt('pc1', 42)
qM = [(FL1, lambda: [vm.wait('hs11')] + two_ways(lambda fl: flag_store(sMYF, 512, fl))),
      (PI1, lambda: [poll_issue(vTMP, sTFL, 512, 'p4')]),
      (PC1, lambda: poll_check(vTMP, sTFL, 512, 'p4', sMASK))]
for i in range(HW, 28): qM.append((2*(i-HW), (lambda i=i: h_load(0, i))))
qM.sort(key=lambda x: x[0])
for i in range(28): qM.append((max(PC1, 2*(i-4) + 2), (lambda i=i: h_load(1, i))))
run([dn_step(0, i, nn) for i in range(28) for nn in range(2)], [qM], 24)
stamp(13)
lb0 = k.newlabel('L_w0'); lb1 = k.newlabel('L_w1')
k(f'v_cndmask_b32 v3, {v(vRW)}, {v(vRW+2)}, {s(sKHM,2)}')
k(f'v_cndmask_b32 v7, {v(vRW+2)}, {v(vRW)}, {s(sKHM,2)}')
qR = [(3+2*i, [f'ds_write_b128 v3, {v(U[0]+4*i,4)} offset:{i*1024}']) for i in range(4)]
qR += [(12, [f's_cmp_eq_u32 {s(sKH)}, 0', f's_cbranch_scc1 {lb0}'] + red_write(U[1], 2) + [lb0 + ':'])]
steps = [dn_step(1, i, nn) for i in range(28) for nn in range(2)]
run(steps, [qR], 24)
for i in range(4): k(f'ds_write_b128 v7, {v(U[2]+4*i,4)} offset:{i*1024}')
k(f's_cmp_lg_u32 {s(sKH)}, 0'); k(f's_cbranch_scc1 {lb1}')
emit(red_write(U[3], 2))
k.label(lb1)
k('s_waitcnt lgkmcnt(0)')
k('s_barrier')
emit(red_read(XF))
for i in range(16): k(f'v_cndmask_b32 {v(U[3]+i)}, {v(U[1]+i)}, {v(U[3]+i)}, {s(sKHM,2)}')
k('s_waitcnt lgkmcnt(4)')
for i in range(8): k(f'v_pk_add_f32 {v(XF+2*i,2)}, {v(XF+2*i,2)}, {v(XF+16+2*i,2)}')
k('s_waitcnt lgkmcnt(0)')
for i in range(8): k(f'v_pk_add_f32 {v(XF+2*i,2)}, {v(XF+2*i,2)}, {v(XF+32+2*i,2)}')
for i in range(8): k(f'v_pk_add_f32 {v(XF+2*i,2)}, {v(XF+2*i,2)}, {v(U[3]+2*i,2)}')
for i in range(8): k(f'v_pk_fma_f32 {v(vXR+2*i,2)}, {v(XF+2*i,2)}, {v(vRK,2)}, {v(vXR+2*i,2)} op_sel_hi:[1,0,1]')
stamp(14)
k(f's_add_u32 {s(sL)}, {s(sL)}, 1')
k(f's_add_u32 {s(sTFL)}, {s(sTFL)}, {NPH*128}'); k(f's_add_u32 {s(sMYF)}, {s(sMYF)}, {NPH*128}')
k(f's_add_u32 {s(sKVB)}, {s(sKVB)}, {128*1024}'); k(f's_add_u32 {s(sKVS)}, {s(sKVS)}, {128*1024}')
k(f's_add_u32 {s(sGFL)}, {s(sGFL)}, 1024')
if STAMP: k(f's_add_u32 {s(sSTI)}, {s(sSTI)}, 15')
k(f's_cmp_lt_u32 {s(sL)}, {opt("nl", 2)}')
k('s_cbranch_scc1 L_layer')
emit(pack_tile(vXR, ACC)); emit(swap_nat(ACC))
k(f's_mov_b32 {s(SRC)}, {s(sOUT)}'); k(f's_mov_b32 {s(SRC+1)}, {s(sOUT+1)}'); k(f's_mov_b32 {s(SRC+2)}, {2048*1024}')
k(f'v_lshrrev_b32 v7, 5, {v(vLANE)}')
k(f'v_lshlrev_b32 v3, 8, {v(vFLG)}'); k('v_lshl_add_u32 v3, v7, 4, v3')
k(f's_lshl_b32 s97, {s(sKH)}, 15'); k(f's_lshl_b32 s98, {s(sTEAM)}, 16'); k('s_add_u32 s97, s97, s98')
k(f's_lshl_b32 s98, {s(sJ)}, 7'); k('s_add_u32 s97, s97, s98')
k(f's_lshl_b32 s98, {s(sS)}, 6'); k('s_add_u32 s97, s97, s98')
k(f'buffer_store_dwordx4 {v(ACC,4)}, v3, {s(SRC,4)}, s97 offen')
k(f'buffer_store_dwordx4 {v(ACC+4,4)}, v3, {s(SRC,4)}, s97 offen offset:32')
k(f's_or_b32 s97, s2, {s(sW)}')
k('s_cbranch_scc1 L_ep_done')
k('s_mov_b32 s97, 0')
n0 = vm.n; emit(flag_store(97, 0, 'sc1')); vm.n = n0
k.label('L_ep_done')
if STAMP:
    k('s_waitcnt vmcnt(0)')
    stamp(0)
    k('s_lshl_b32 s97, s2, 2'); k(f's_add_u32 s97, s97, {s(sW)}'); k('s_lshl_b32 s97, s97, 8'); k(f's_add_u32 s97, s97, {STAMPS}')
    k(f'v_lshlrev_b32 v3, 2, {v(vLANE)}')
    k(f'buffer_store_dword {v(vSTMP)}, v3, {s(SWS,4)}, s97 offen')
k.label('L_exit')
k('s_endpgm')

k.label('L_att_retry')
k(f's_cmp_lg_u32 {s(sRETRY)}, 0')
k('s_cbranch_scc1 L_att_ok')
k(f's_mov_b32 {s(sRETRY)}, 1')
k('s_waitcnt vmcnt(0)')
k(f'v_mov_b32 {v(vMA)}, 0xff800000'); k(f'v_mov_b32 {v(vMB)}, 0xff800000')
k(f'v_mov_b32 {v(vKA)}, {v(vL16)}')
k('s_mov_b32 s94, 0')
k.label('L_mx')
k(f'ds_read_b128 {v(KB,4)}, {v(vKA)}')
k('s_add_u32 s94, s94, 1'); k('s_and_b32 s95, s94, 3'); k('s_cmp_eq_u32 s95, 0')
k('s_cselect_b32 s95, 4096, 0'); k('s_add_u32 s95, s95, 1024')
k('s_waitcnt lgkmcnt(0)')
k(mfma(S0, v(KB,4), v(QA,4), '0')); k(mfma(S1, v(KB,4), v(QB,4), '0'))
k(f'v_add_u32 {v(vKA)}, s95, {v(vKA)}')
emit(rowmax(vMA, S0, False)); emit(rowmax(vMB, S1, False))
k('s_cmp_lt_u32 s94, 64')
k('s_cbranch_scc1 L_mx')
k(f'v_mov_b32 {v(vKA)}, {v(vL16)}'); k(f'v_mov_b32 {v(vVA)}, {v(vVA0)}')
k(f'ds_read_b128 {v(KB,4)}, {v(vKA)}'); k(f'ds_read_b128 {v(KB+4,4)}, {v(vKA)} offset:1024')
k(f'ds_read_b128 {v(VLO,4)}, {v(vVA)}'); k(f'ds_read_b128 {v(VHI,4)}, {v(vVA)} offset:512')
for i in range(32): k(f'v_mov_b32 {v(OA+i)}, 0')
for i in range(8): k(f'v_mov_b32 {v(S1+8+i)}, 0')
for i in range(4): k(f'v_mov_b32 {v(VHI+4+i)}, 0')
cinit()
k('s_mov_b32 s94, 0')
k.settle(12)
k.label('L_rb')
for t in range(4):
    koff = (t+2)*1024 if t < 2 else 8192 + (t-2)*1024
    kadd = ('post', f'v_add_u32 {v(vKA)}, 0x2000, {v(vKA)}') if t == 3 else None
    emit(att_tile(t, False, False, koff, ((t+1) & 3)*1024, t == 3, kadd, {}))
k('s_add_u32 s94, s94, 1'); k('s_cmp_lt_u32 s94, 16')
k('s_cbranch_scc1 L_rb')
k.settle(16)
k('s_branch L_att_fin')
for c in COLD: c()

k.raw(f'''.section .rodata,"a"
.p2align 6
.amdhsa_kernel {NAME}_kernel
  .amdhsa_next_free_vgpr 512
  .amdhsa_next_free_sgpr 102
  .amdhsa_accum_offset 256
  .amdhsa_group_segment_fixed_size 0
  .amdhsa_kernarg_size 88
  .amdhsa_user_sgpr_count 2
  .amdhsa_user_sgpr_kernarg_segment_ptr 1
  .amdhsa_system_sgpr_workgroup_id_x 1
.end_amdhsa_kernel''')
out = [x for x in sys.argv[1:] if not x.startswith('--')]
open(out[0] if out else f'cdna_kernels/{NAME}.s', 'w').write(k.text())
print('nops inserted:', k.nops_inserted, file=sys.stderr)
```

```python
import sys
from asmlib import *

NAME = 'interleave_layers__grouped_kv_mqa__dense_activation_silu__prompt'
ARG = sys.argv
STAMP = '--stamp' in ARG or '--clk' in ARG
STI = 's_memtime' if '--clk' in ARG else 's_memrealtime'
FORCE_SLOW = '--slow' in ARG
FORCE_RETRY = '--retry' in ARG
def opt(name, dflt):
    for x in ARG:
        if x.startswith('--'+name+'='): return int(x.split('=')[1])
    return dflt

PFLAG = 0x1000; RFLAG = 0x1400; GFLAG = 0x2000; LFLAG = 0x2800; TFLAG = 0x4000; NPH = 5
WOP = 0x10000; W1P = 0x90000; W2P = 0x260000
XP = 0x420000; OQ = 0x620000; ST = 0x820000; KVG = 0x860000; KVL = 0x8A0000; HH = 0x900000
STAMPS = 0x4000000
OOB = 0x20000000
K = 1024
L_X1S = 64*K; L_RP = 0; L_RED = 16*K; L_WQ = 72*K; L_ONES = 136*K; L_CS = 140*K; L_FW = 142*K; L_CKV = 143*K; L_WKV = 144*K
SWS, SQ, SKV, SRC = 4, 8, 12, 16
sTEAM, sJ, sW, sEP, sFAST, sL, sS, sKH, sTO, sONE, sMYF, sTFL = range(20, 32)
sKHM, sMASK, sST, sOUT, SJOB = 32, 34, 40, 42, 44
sJS, sJD, sRETRY, sSTI = 36, 37, 38, 39
sKVW, sXP, sSTP, sXA, sXB, sRES, sKVB, sFV, sGFL = range(48, 57)
sWO = 57; sW1 = 59; sW2 = 69; sHP = 71; sHL = 73; sWQ = 74; sDQ = 75; sKVS = 77; sKFL = 78; sSTQ = 79
T0 = 80
sPTR = 80
vL16, vLANE, vFLG, vTMP, vSW, vL16b, vRR, vTM2 = range(8)
vXR = 8
vR0, vR1, vRK, vT = 24, 25, 26, 27
vM0, vM1 = 28, 32
vEPO, vSTMP, vCSKV, vTR = 36, 37, 38, 39
vRW = 40
vRWD = 43
ACC = 44
XF = 108
WF = 180
CS1 = 244
OA, OB, CA, CB, S0, S1, QA, QB, KB, VLO, VHI = 44, 60, 76, 92, 108, 124, 140, 144, 148, 156, 164
vIDX, vKA, vVA, vVI, vVA0, vMA, vMB = 172, 173, 174, 175, 176, 177, 178
vFL = 252; vFW = 179

k = Emitter()

class VM:
    def __init__(self): self.n = 0; self.tags = {}
    def issue(self, tag=None):
        self.n += 1
        if tag is not None: self.tags[tag] = self.n
    def wait(self, tag): return f's_waitcnt vmcnt({min(63, self.n - self.tags[tag])})'
vm = VM()

FINE = '--fine' in ARG
PRO = '--pro' in ARG
SN = []
def stampL(name, fine=False):
    if not STAMP or (fine and not FINE): return []
    i = len(SN); SN.append(name)
    return [f'{STI} {s(sST,2)}', f's_add_u32 m0, {s(sSTI)}, {i}', 's_waitcnt lgkmcnt(0)', f'v_writelane_b32 {v(vSTMP)}, {s(sST)}, m0']
def stamp(name, fine=False):
    for x in stampL(name, fine): k(x)

def ld(dst, sreg, i, tag=None):
    vm.issue(tag)
    return f'buffer_load_dwordx4 {dst}, {v(vL16 if i < 4 else vL16b)}, {s(SWS,4)}, {s(sreg)} offen offset:{(i%4)*1024} sc1'

def spin_guard(lbl_loop):
    k(f's_sub_u32 {s(sTO)}, {s(sTO)}, 1')
    k(f's_cmp_eq_u32 {s(sTO)}, 0')
    k('s_cbranch_scc1 L_exit')
    k(f's_branch {lbl_loop}')

COLD = []
def flag_check(reg, mask):
    L = [f'v_xor_b32 {v(reg)}, {s(sEP)}, {v(reg)}', f'v_cmp_lt_u32 vcc, 7, {v(reg)}']
    return L
def poll_issue(reg, sreg, off, tag):
    vm.issue(tag)
    return f'buffer_load_dword {v(reg)}, {v(vFLG)}, {s(SWS,4)}, {s(sreg)} offen offset:{off} sc1'
def poll_check(reg, sreg, off, tag, mask):
    lr = k.newlabel('L_spin'); lb = k.newlabel('L_back')
    L = [vm.wait(tag), f'v_xor_b32 {v(reg)}, {s(sEP)}, {v(reg)}', f'v_cmp_lt_u32 vcc, 7, {v(reg)}']
    if mask is not None: L += [f's_and_b64 vcc, vcc, {s(mask,2)}', f's_cbranch_scc1 {lr}']
    else: L += [f's_cbranch_vccnz {lr}']
    L += [lb + ':']
    def cold():
        k.label(lr)
        k(f's_sub_u32 {s(sTO)}, {s(sTO)}, 1')
        k('s_cbranch_scc1 L_exit')
        k(f'buffer_load_dword {v(reg)}, {v(vFLG)}, {s(SWS,4)}, {s(sreg)} offen offset:{off} sc1')
        k('s_waitcnt vmcnt(0)')
        k(f'v_xor_b32 {v(reg)}, {s(sEP)}, {v(reg)}')
        k(f'v_cmp_lt_u32 vcc, 7, {v(reg)}')
        if mask is not None:
            k(f's_and_b64 vcc, vcc, {s(mask,2)}'); k(f's_cbranch_scc1 {lr}')
        else: k(f's_cbranch_vccnz {lr}')
        k(f's_branch {lb}')
    COLD.append(cold)
    return L
def poll4_issue(sreg, tag):
    vm.issue(tag)
    return f'buffer_load_dwordx4 {v(vFL,4)}, {v(vL16)}, {s(SWS,4)}, {s(sreg)} offen sc1'
def poll4_check(sreg, tag):
    lr = k.newlabel('L_spin'); lb = k.newlabel('L_back')
    chk = [f'v_xor_b32 {v(vFL+i)}, {s(sEP)}, {v(vFL+i)}' for i in range(4)]
    chk += [f'v_or3_b32 {v(vFL)}, {v(vFL)}, {v(vFL+1)}, {v(vFL+2)}', f'v_or_b32 {v(vFL)}, {v(vFL)}, {v(vFL+3)}',
            f'v_cmp_lt_u32 vcc, 7, {v(vFL)}']
    def cold():
        k.label(lr)
        k(f's_sub_u32 {s(sTO)}, {s(sTO)}, 1')
        k('s_cbranch_scc1 L_exit')
        k(f'buffer_load_dwordx4 {v(vFL,4)}, {v(vL16)}, {s(SWS,4)}, {s(sreg)} offen sc1')
        k('s_waitcnt vmcnt(0)')
        for x in chk: k(x)
        k(f's_cbranch_vccnz {lr}')
        k(f's_branch {lb}')
    COLD.append(cold)
    return [vm.wait(tag)] + chk + [f's_cbranch_vccnz {lr}', lb + ':']

def emit(L):
    for x in L: k(x)

def two_ways(fn):
    l1 = k.newlabel('L_slow'); l2 = k.newlabel('L_join')
    n0 = vm.n
    A = fn('')
    vm.n = n0
    B = fn('sc1')
    def cold():
        k.label(l1); k.settle(16); emit(B); k(f's_branch {l2}')
    COLD.append(cold)
    return [f's_cmp_eq_u32 {s(sFAST)}, 0', f's_cbranch_scc1 {l1}'] + A + [l2 + ':']

def flag_store(sreg, off, fl):
    vm.issue()
    return ['s_mov_b64 exec, 1', f'buffer_store_dword {v(vEPO)}, off, {s(SWS,4)}, {s(sreg)} offset:{off} {fl}', 's_mov_b64 exec, -1']
def st4(src, sreg, off, fl, tag=None):
    vm.issue(tag)
    return f'buffer_store_dwordx4 {v(src,4)}, {v(vL16)}, {s(SWS,4)}, {s(sreg)} offen offset:{off} {fl}'

def pack_tile(src, dst):
    return [f'v_cvt_pk_bf16_f32 {v(dst+i)}, {v(src+2*i)}, {v(src+2*i+1)}' for i in range(8)]
def swap_nat(P):
    return [f'v_permlane32_swap_b32 {v(P+x)}, {v(P+y)}' for x, y in ((0,2),(1,3),(4,6),(5,7))]
mfma = lambda d, A, B, c=None: f'v_mfma_f32_32x32x16_bf16 {v(d,16)}, {A}, {B}, {c if c is not None else v(d,16)}'

def publish_x(ph):
    P = ACC
    emit(pack_tile(vXR, P)); emit(swap_nat(P))
    def f(fl):
        L = [st4(P, sXP, 0, fl), st4(P+4, sXP, 1024, fl)]
        for i in range(8):
            L.append(f'v_dot2_f32_bf16 {v(P+8)}, {v(P+i)}, {s(sONE)}, {"0" if i==0 else v(P+8)}')
            L.append(f'v_dot2_f32_bf16 {v(P+9)}, {v(P+i)}, {v(P+i)}, {"0" if i==0 else v(P+9)}')
        L += [f'v_permlane32_swap_b32 {v(P+8)}, {v(P+9)}', f'v_add_f32 {v(P+8)}, {v(P+8)}, {v(P+9)}']
        vm.issue()
        L += [f'buffer_store_dword {v(P+8)}, {v(vSW)}, {s(SWS,4)}, {s(sSTP)} offen {fl}', 's_waitcnt vmcnt(0)']
        return L + flag_store(sMYF, ph*128, fl)
    emit(two_ways(f))

def finish_stats(T, dR, dM):
    return [f'v_mul_f32 {v(T)}, 0x3b000000, {v(T)}', f'v_mul_f32 {v(T+1)}, 0x3b000000, {v(T+1)}',
            f'v_fma_f32 {v(T+1)}, -{v(T)}, {v(T)}, {v(T+1)}', f'v_max_f32 {v(T+1)}, 0, {v(T+1)}',
            f'v_add_f32 {v(T+1)}, 0x3727c5ac, {v(T+1)}', f'v_rsq_f32 {v(dR)}, {v(T+1)}',
            f'v_cvt_pk_bf16_f32 {v(dM)}, -{v(T)}, -{v(T)}']

def red_write(tile, d):
    return [f'ds_write_b128 {v(vRW+d-1)}, {v(tile+4*i,4)} offset:{i*1024}' for i in range(4)]
def red_read(T):
    return [f'ds_read_b128 {v(T+4*i,4)}, {v(vRR)} offset:{i*1024}' for i in range(12)]

def gemm4(tagp, waits=True, cinit='0', hook_mid=None, LAG=3, fill=()):
    Tt = [ACC+16*i for i in range(4)]
    W = lambda ks, nn: v(WF + 8*ks + 4*nn, 4)
    for ks in range(8):
        if waits: k(vm.wait(f'{tagp}{ks}'))
        k(mfma(Tt[0], W(ks,0), v(XF+4*ks,4), '0' if ks == 0 else None))
        k(mfma(Tt[1], W(ks,1), v(XF+4*ks,4), '0' if ks == 0 else None))
        if fill: emit(fill.pop(0)())
    if hook_mid: emit(hook_mid)
    wr = red_write(Tt[0], 3) + red_write(Tt[1], 2)
    for ks in range(8 + LAG):
        if ks < 8:
            if waits: k(vm.wait(f'{tagp}{8+ks}'))
            k(mfma(Tt[2], W(ks,0), v(XF+32+4*ks,4), '0' if ks == 0 else None))
        if ks >= LAG:
            j = ks - LAG
            k(mfma(Tt[3], W(j,1), v(XF+32+4*j,4), cinit if j == 0 else None))
        if fill: emit(fill.pop(0)())
        if ks >= 2 and wr:
            k(wr.pop(0))
            if ks >= LAG and wr: k(wr.pop(0))
    emit(wr)
    emit(red_write(Tt[2], 1))

def x_loads(sA, sB, tagp):
    for i in range(8): k(ld(v(XF+4*i,4), sA, i, f'{tagp}{i}'))
    for i in range(8): k(ld(v(XF+32+4*i,4), sB, i, f'{tagp}{8+i}'))

def wq_dma():
    G = []
    for i in range(16):
        def g(i=i):
            g = []
            if i == 0: g += [f's_lshl_b32 s91, {s(sW)}, 14', f's_add_u32 m0, s91, {L_WQ}', f's_mov_b32 s90, {s(sWQ)}']
            elif i % 4 == 0: g += ['s_add_u32 m0, m0, 4096', f's_add_u32 s90, s90, {7168+4096}']
            else: g += ['s_add_u32 s90, s90, 7168']
            g.append(f'buffer_load_dwordx4 {v(vRWD)}, {s(SQ,4)}, s90 offen offset:{(i%4)*1024} lds')
            vm.issue()
            return g
        G.append(g)
    return G
k.raw(f'''; single persistent kernel: 256 workgroups (one per CU), 4 waves each.
; @launch grid=(256,1,1) block=(256,1,1) lds=163840
.amdgcn_target "amdgcn-amd-amdhsa--gfx950"
.text
.globl {NAME}_kernel
.p2align 8
.type {NAME}_kernel,@function
{NAME}_kernel:''')
k('s_cmp_ge_u32 s2, 256')
k('s_cbranch_scc1 L_exit')
k(f's_load_dwordx2 {s(SWS,2)}, s[0:1], 80')
k(f's_load_dwordx16 {s(sPTR,16)}, s[0:1], 0')
k(f's_load_dwordx2 {s(sOUT,2)}, s[0:1], 64')
k('v_lshrrev_b32 v3, 6, v0')
k(f'v_and_b32 {v(vLANE)}, 63, v0')
k(f'v_readfirstlane_b32 {s(sW)}, v3')
k(f'v_lshlrev_b32 {v(vL16)}, 4, {v(vLANE)}')
k(f's_mov_b32 {s(SWS+2)}, 0x10000000')
for r in (SWS, SQ, SKV, SRC, SJOB): k(f's_mov_b32 {s(r+3)}, 0x20000')
k(f's_mov_b32 {s(SQ+2)}, {512*1024}')
k(f's_mov_b32 {s(SKV+2)}, {512*32}')
k(f's_mov_b32 {s(SRC+2)}, {2048*1024}')
k('s_and_b32 s96, s2, 7')
k('s_lshr_b32 s97, s2, 3')
k(f's_and_b32 {s(sJ)}, s97, 7')
k('s_lshr_b32 s97, s97, 3')
k('s_lshl_b32 s96, s96, 2')
k(f's_add_u32 {s(sTEAM)}, s96, s97')
k(f's_and_b32 {s(sS)}, {s(sW)}, 1')
k(f's_lshr_b32 {s(sKH)}, {s(sW)}, 1')
k(f'v_and_b32 v3, 31, {v(vLANE)}')
k(f'v_lshrrev_b32 v7, 5, {v(vLANE)}')
k(f's_lshl_b32 s96, {s(sTEAM)}, 16')
k(f'v_lshrrev_b32 v65, 3, {v(vLANE)}')
k(f'v_and_b32 v74, 7, {v(vLANE)}'); k(f'v_and_b32 v76, 16, {v(vLANE)}'); k('v_lshlrev_b32 v74, 4, v74')
k('v_lshlrev_b32 v76, 2, v76'); k('v_xor_b32 v74, v74, v76')
k(f'v_lshl_add_u32 {v(vRWD)}, v65, 10, v74')
k(f's_lshl_b32 {s(sWQ)}, {s(sW)}, 17'); k(f's_lshl_b32 s99, {s(sJ)}, 7'); k(f's_add_u32 {s(sWQ)}, {s(sWQ)}, s99')
k(f'v_and_b32 v84, 15, {v(vLANE)}'); k(f'v_lshrrev_b32 v85, 4, {v(vLANE)}')
k('v_xor_b32 v88, v84, v85'); k('v_lshlrev_b32 v88, 4, v88'); k('v_lshl_add_u32 v88, v85, 10, v88')
for b in range(1, 4):
    k(f'v_xor_b32 {v(88+b)}, {64*b}, v88'); k(f'v_add_u32 {v(88+b)}, {3072*b}, {v(88+b)}')
k(f's_lshr_b32 s99, {s(sJ)}, 2')
k('s_lshl_b32 s99, s99, 1')
k(f's_cmp_eq_u32 s99, {s(sW)}')
k(f's_cselect_b32 {s(sKVW)}, 1, 0')
k('s_lshl_b32 s97, s2, 2')
k(f's_add_u32 s97, s97, {s(sW)}')
k('s_lshr_b32 s98, s97, 1')
k('s_cmp_ge_u32 s97, 448')
k('s_cbranch_scc1 L_job_n')
k(f's_mov_b32 {s(SJOB+2)}, {512*3584}')
k('s_lshr_b32 s99, s98, 3'); k('s_lshl_b32 s99, s99, 1'); k(f's_add_u32 s99, s99, {s(sS)}')
k('s_and_b32 s98, s98, 7')
k(f's_mul_i32 s100, s99, {33*1024}'); k(f's_add_u32 s100, s100, {W1P}')
k('s_lshr_b32 s101, s98, 2'); k('s_lshl_b32 s101, s101, 9')
k('s_and_b32 s3, s98, 3'); k('s_lshl_b32 s3, s3, 2')
k('s_add_u32 s101, s101, s3'); k('s_add_u32 s101, s101, s100'); k(f's_add_u32 s101, s101, {32*1024}')
k('s_movk_i32 s3, 3584')
k('s_branch L_job_go')
k.label('L_job_n')
k('s_cmp_ge_u32 s97, 896')
k(f's_mov_b32 s99, {1792*1024}'); k(f's_cselect_b32 {s(SJOB+2)}, {512*1024}, s99')
k('s_movk_i32 s99, 224'); k('s_cselect_b32 s99, 448, s99'); k('s_sub_u32 s98, s98, s99')
k('s_cmp_ge_u32 s97, 896')
k(f's_mov_b32 s101, {112*1024}'); k(f's_cselect_b32 s101, {32*1024}, s101')
k(f's_mov_b32 s100, {W2P}'); k(f's_cselect_b32 s100, {WOP}, s100')
k('s_and_b32 s99, s98, 7'); k('s_lshl_b32 s99, s99, 1'); k(f's_add_u32 s99, s99, {s(sS)}')
k('s_lshr_b32 s98, s98, 3')
k('s_mul_i32 s101, s101, s99'); k('s_add_u32 s100, s100, s101')
k(f's_mov_b32 s101, {OOB}')
k('s_movk_i32 s3, 1024')
k.label('L_job_go')
k('s_lshl_b32 s97, s98, 12'); k('s_add_u32 s100, s100, s97')
k('s_lshl_b32 s98, s98, 1'); k(f's_add_u32 s98, s98, {s(sS)}')
k('s_mul_i32 s97, s98, s3'); k('s_lshl_b32 s97, s97, 5')
k('s_lshr_b32 s99, s99, 1'); k('s_lshl_b32 s99, s99, 7'); k(f's_add_u32 {s(sJS)}, s97, s99')
k('v_mul_lo_u32 v75, s3, v65'); k('v_add_u32 v75, v75, v74')
k(f's_lshl_b32 {s(sJD)}, s3, 3')
k(f's_lshl_b32 {s(sKFL)}, {s(sTEAM)}, 5')
k(f's_lshl_b32 s97, {s(sJ)}, 2')
k(f's_add_u32 {s(sKFL)}, {s(sKFL)}, s97')
k(f's_mov_b32 {s(sTO)}, 0x40000')
k(f's_mov_b32 {s(sONE)}, 0x3f803f80')
k(f's_mov_b32 {s(sFAST)}, 0')
k(f's_mov_b32 {s(sL)}, 0')
k(f's_sub_u32 {s(sKHM)}, 0, {s(sKH)}')
k(f's_mov_b32 {s(sKHM+1)}, {s(sKHM)}')
k(f's_mul_i32 {s(sTFL)}, {s(sTEAM)}, {2*NPH*128}')
k(f's_add_u32 {s(sTFL)}, {s(sTFL)}, {TFLAG}')
k(f's_lshl_b32 s97, {s(sJ)}, 4'); k(f's_lshl_b32 s98, {s(sW)}, 2')
k(f's_add_u32 {s(sMYF)}, {s(sTFL)}, s97'); k(f's_add_u32 {s(sMYF)}, {s(sMYF)}, s98')
k(f's_lshl_b32 s97, {s(sW)}, 3'); k(f's_lshl_b32 {s(sMASK)}, 0xff, s97')
k(f's_lshl_b32 s97, {s(sJ)}, 2'); k('s_lshl_b32 s97, 15, s97')
k(f's_or_b32 {s(sMASK)}, {s(sMASK)}, s97'); k(f's_mov_b32 {s(sMASK+1)}, 0')
k(f's_lshl_b32 s97, {s(sKH)}, 15'); k('s_add_u32 s97, s97, s96'); k(f's_add_u32 s97, s97, {XP}')
k(f's_lshl_b32 s98, {s(sJ)}, 12'); k(f's_lshl_b32 s99, {s(sS)}, 11'); k('s_add_u32 s98, s98, s99')
k(f's_add_u32 {s(sXP)}, s97, s98')
k(f's_lshl_b32 s98, {s(sW)}, 13')
k(f's_add_u32 {s(sXB)}, s97, s98')
k(f's_xor_b32 {s(sXA)}, {s(sXB)}, 0x8000')
k('s_lshr_b32 s97, s96, 3'); k(f's_add_u32 s97, s97, {ST}')
k(f's_lshl_b32 s98, {s(sKH)}, 9'); k(f's_add_u32 {s(sSTQ)}, s97, s98')
k(f's_lshl_b32 s98, {s(sJ)}, 10'); k(f's_lshl_b32 s99, {s(sS)}, 3'); k('s_add_u32 s98, s98, s99')
k(f's_add_u32 {s(sSTP)}, {s(sSTQ)}, s98')
k(f's_lshr_b32 s97, {s(sTEAM)}, 2'); k('s_lshl_b32 s98, s97, 14'); k(f's_lshl_b32 s99, {s(sW)}, 12')
k('s_add_u32 s98, s98, s99'); k(f's_add_u32 {s(sKVB)}, s98, {KVG}')
k(f's_mov_b32 {s(sGFL)}, {GFLAG}')
k(f's_lshr_b32 s97, {s(sTEAM)}, 1'); k('s_lshl_b32 s97, s97, 13')
k(f's_and_b32 s98, {s(sTEAM)}, 1'); k('s_lshl_b32 s98, s98, 11'); k('s_add_u32 s97, s97, s98')
k(f's_lshr_b32 s98, {s(sJ)}, 2'); k('s_lshl_b32 s98, s98, 10'); k('s_add_u32 s97, s97, s98')
k(f's_add_u32 {s(sKVS)}, s97, {KVG}')
k(f's_lshl_b32 s97, {s(sJ)}, 1'); k(f's_add_u32 s97, s97, {s(sS)}'); k('s_xor_b32 s98, s97, 1')
k(f's_lshl_b32 s99, {s(sW)}, 13'); k(f's_add_u32 s99, s99, {WOP}')
k(f's_lshl_b32 {s(sWO)}, s98, 15'); k(f's_add_u32 {s(sWO)}, {s(sWO)}, s99')
k(f's_lshl_b32 {s(sWO+1)}, s97, 15'); k(f's_add_u32 {s(sWO+1)}, {s(sWO+1)}, s99')
k(f's_mul_i32 s99, {s(sW)}, {28*1024}'); k(f's_add_u32 s99, s99, {W2P}')
k(f's_mul_i32 {s(sW2)}, s98, {112*1024}'); k(f's_add_u32 {s(sW2)}, {s(sW2)}, s99')
k(f's_mul_i32 {s(sW2+1)}, s97, {112*1024}'); k(f's_add_u32 {s(sW2+1)}, {s(sW2+1)}, s99')
k(f's_mul_i32 s97, {s(sJ)}, 7'); k(f's_add_u32 s97, s97, {s(sW)}')
k(f's_mul_i32 {s(sW1)}, s97, {33*1024}'); k(f's_add_u32 {s(sW1)}, {s(sW1)}, {W1P}')
k(f's_add_u32 {s(sW1+5)}, {s(sW1)}, {4*33*1024}')
k(f's_mul_i32 s98, {s(sTEAM)}, {224*1024}'); k(f's_add_u32 s98, s98, {HH}')
k('s_lshl_b32 s97, s97, 11'); k(f's_add_u32 {s(sHP)}, s98, s97')
k(f's_add_u32 {s(sHP+1)}, {s(sHP)}, {4*2048}')
k(f's_mul_i32 s97, {s(sW)}, {28*1024}'); k(f's_add_u32 {s(sHL)}, s98, s97')
k(f's_cmp_eq_u32 {s(sW)}, 3')
k(f's_cselect_b32 {s(sW1+5)}, {OOB}, {s(sW1+5)}')
k(f's_cselect_b32 {s(sHP+1)}, {OOB}, {s(sHP+1)}')
for st in range(2):
    for i in range(1, 5): k(f's_add_u32 {s(sW1+5*st+i)}, {s(sW1+5*st+i-1)}, 8192')
k(f'v_lshlrev_b32 {v(vFLG)}, 2, v3')
k(f'v_lshlrev_b32 {v(vSW)}, 4, v3')
k(f'v_lshl_add_u32 {v(vSW)}, v7, 2, {v(vSW)}')
k(f'v_add_u32 {v(vL16b)}, 4096, {v(vL16)}')
k(f's_mul_i32 s97, {s(sW)}, {12*1024}'); k(f's_add_u32 s97, s97, {L_RED}')
k(f'v_add_u32 {v(vRR)}, s97, {v(vL16)}')
for d in (1, 2, 3):
    k(f's_xor_b32 s97, {s(sW)}, {d}'); k(f's_mul_i32 s97, s97, {12*1024}'); k(f's_add_u32 s97, s97, {L_RED + (d-1)*4096}')
    k(f'v_add_u32 {v(vRW+d-1)}, s97, {v(vL16)}')
k(f'v_and_b32 v76, 12, {v(vLANE)}'); k('v_lshlrev_b32 v76, 5, v76')
k(f'v_and_b32 v77, 8, {v(vLANE)}'); k('v_lshl_add_u32 v76, v77, 3, v76')
k(f'v_and_b32 v77, 16, {v(vLANE)}'); k('v_lshl_add_u32 v76, v77, 1, v76')
k(f'v_and_b32 v77, 3, {v(vLANE)}'); k('v_lshl_add_u32 v76, v77, 3, v76')
k(f's_lshl_b32 s97, {s(sS)}, 6'); k('v_xor_b32 v76, s97, v76')
k(f's_lshl_b32 s97, {s(sW)}, 14'); k(f's_add_u32 s97, s97, {L_WQ}')
k(f'v_lshl_add_u32 {v(vTR)}, v7, 10, v76'); k(f'v_add_u32 {v(vTR)}, s97, {v(vTR)}')
k(f's_cmp_eq_u32 s101, {OOB}')
k('s_cselect_b32 s97, 9, 10'); k('s_cselect_b32 s98, 512, 0'); k('s_add_u32 s98, s98, 512')
k('v_lshlrev_b32 v77, s97, v7'); k('v_add_u32 v76, v76, v77')
k(f's_lshl_b32 s97, {s(sKH)}, 13'); k(f's_add_u32 s97, s97, {L_WQ}')
k(f'v_add_u32 {v(vR0)}, s97, v76'); k(f'v_add_u32 {v(vR1)}, s98, {v(vR0)}')
k('v_lshlrev_b32 v92, 7, v84')
k(f'v_lshlrev_b32 v93, 7, {v(vLANE)}'); k(f'v_add_u32 v93, {s(sTFL)}, v93')
k(f's_and_b32 s97, {s(sKFL)}, -128'); k(f's_add_u32 s97, s97, {LFLAG}')
k(f'v_and_b32 v76, 1, {v(vLANE)}'); k('v_lshl_add_u32 v76, v76, 10, s97')
k(f'v_cmp_gt_u32 vcc, 10, {v(vLANE)}'); k('v_cndmask_b32 v93, v76, v93, vcc')
k(f's_add_u32 s97, {s(sKFL)}, {s(sW)}'); k('s_lshl_b32 s97, s97, 7'); k(f's_add_u32 s97, s97, {KVL}')
k(f'v_and_b32 v76, 1, {v(vLANE)}'); k('v_lshl_add_u32 v76, v76, 17, s97')
k(f'v_cmp_gt_u32 vcc, 16, {v(vLANE)}'); k('v_cndmask_b32 v93, v76, v93, vcc')
k(f's_and_b32 s97, {s(sSTP)}, -1024')
k(f'v_and_b32 v76, 7, {v(vLANE)}'); k('v_lshl_add_u32 v76, v76, 7, s97')
k(f'v_cmp_gt_u32 vcc, 32, {v(vLANE)}'); k('v_cndmask_b32 v93, v76, v93, vcc')
k(f'v_and_b32 v76, 11, {v(vLANE)}'); k('v_cmp_eq_u32 vcc, 0, v76')
k(f'v_mov_b32 v77, {s(sONE)}')
for i in range(4): k(f'v_cndmask_b32 {v(80+i)}, 0, v77, vcc')
k(f's_lshl_b32 s97, {s(sW)}, 10'); k(f's_add_u32 s97, s97, {L_ONES}')
k(f'v_add_u32 v76, s97, {v(vL16)}')
k('ds_write_b128 v76, v[80:83]')
k('s_waitcnt lgkmcnt(0)')
if STAMP:
    k(f's_mov_b32 {s(sSTI)}, 0'); k(f'v_mov_b32 {v(vSTMP)}, 0')
stamp('start')
k(f's_load_dword {s(sEP)}, {s(SWS,2)}, 0')
k(f's_mov_b32 {s(SRC)}, {s(sPTR)}')
k(f's_mov_b32 {s(SRC+1)}, {s(sPTR+1)}')
k(f's_mov_b32 {s(SQ)}, {s(sPTR+2)}')
k(f's_mov_b32 {s(SQ+1)}, {s(sPTR+3)}')
k(f's_bitcmp1_b32 {s(sJ)}, 0')
k(f's_cselect_b32 {s(SKV)}, {s(sPTR+6)}, {s(sPTR+4)}')
k(f's_cselect_b32 {s(SKV+1)}, {s(sPTR+7)}, {s(sPTR+5)}')
k(f's_lshl_b32 s97, {s(sJ)}, 2'); k(f's_add_u32 s97, s97, {s(sW)}'); k('s_lshl_b32 s97, s97, 11'); k('s_add_u32 s97, s97, s96')
vm.issue(); k(f'buffer_load_dword {v(vT)}, v92, {s(SRC,4)}, s97 offen')
SR = [172, 176, 244, 248]
def job_loads():
    k('s_cmp_ge_u32 s2, 224')
    k(f's_cselect_b32 {s(SJOB)}, {s(sPTR+8)}, {s(sPTR+14)}'); k(f's_cselect_b32 {s(SJOB+1)}, {s(sPTR+9)}, {s(sPTR+15)}')
    k('s_cmp_lt_u32 s2, 112')
    k(f's_cselect_b32 {s(SJOB)}, {s(sPTR+12)}, {s(SJOB)}'); k(f's_cselect_b32 {s(SJOB+1)}, {s(sPTR+13)}, {s(SJOB+1)}')
    for i in range(4):
        vm.issue()
        k(f'buffer_load_dwordx4 {v(SR[i],4)}, v75, {s(SJOB,4)}, {s(sJS)} offen')
        if i < 3: k(f's_add_u32 {s(sJS)}, {s(sJS)}, {s(sJD)}')
    vm.issue(); k(f'buffer_load_dword {v(vT)}, v93, {s(SWS,4)}, 0 offen sc1')
JP = opt('jp', 2)
if JP == 0: job_loads()
k(f's_and_b32 s97, {s(sTEAM)}, 3'); k('s_lshl_b32 s97, s97, 15'); k(f's_add_u32 s97, s97, {s(sWQ)}')
k('v_lshlrev_b32 v76, 10, v3')
vm.issue(); k(f'buffer_load_dword {v(vT)}, v76, {s(SQ,4)}, s97 offen')
k(f's_lshl_b32 s97, {s(sW)}, 12'); k(f's_add_u32 m0, s97, {L_WKV}')
for i in range(4):
    vm.issue(); k(f'buffer_load_dwordx4 {v(vL16)}, {s(SKV,4)}, s97 offen offset:{i*1024} lds')
if PRO: stamp('p_kv')
k(f's_lshl_b32 s98, {s(sW)}, 8'); k('s_add_u32 s99, s96, s98'); k(f's_lshl_b32 m0, {s(sW)}, 14')
for i in range(16):
    if i and i % 4 == 0: k('s_add_u32 m0, m0, 4096'); k('s_add_u32 s99, s99, 16384')
    vm.issue('xd')
    k(f'buffer_load_dwordx4 {v(88+i%4)}, {s(SRC,4)}, s99 offen offset:{(i%4)*1024} lds')
if PRO: stamp('p_x')
if JP == 1: job_loads()
WQG = wq_dma(); WQN = [0]
def wq_next(n=1):
    for _ in range(n):
        if WQG:
            if STAMP and WQN[0]: k(f's_add_u32 m0, s91, {L_WQ + ((WQN[0]-1)//4)*4096}')
            emit(WQG.pop(0)()); vm.tags[f'wq{WQN[0]}'] = vm.n; WQN[0] += 1
wq_next(opt('wq0', 4))
k('s_waitcnt lgkmcnt(0)')
k(f's_and_b32 {s(sEP)}, {s(sEP)}, -8')
k(f's_add_u32 {s(sEP)}, {s(sEP)}, 8')
k('s_getreg_b32 s97, hwreg(HW_REG_XCC_ID)')
k('s_and_b32 s97, s97, 7')
k(f's_mov_b32 {s(sFV)}, s97')
k(f's_or_b32 s97, s97, {s(sEP)}')
k(f'v_mov_b32 {v(vEPO)}, s97')
k(f's_cmp_lg_u32 {s(sW)}, 1')
k('s_cbranch_scc1 L_pdone')
k(f's_add_u32 s97, {s(sKFL)}, {PFLAG}')
n0 = vm.n; emit(flag_store(97, 0, 'sc1')); vm.n = n0
k.label('L_pdone')
SR = [172, 176, 244, 248]
def wq_tr(i):
    if i == 0: k(f'v_xor_b32 v87, 64, {v(vTR)}')
    ad = v(vTR) if i & 1 else 'v87'
    k(f'ds_read_b64_tr_b16 {v(WF+4*i,2)}, {ad} offset:{(i>>1)*2048}')
    k(f'ds_read_b64_tr_b16 {v(WF+4*i+2,2)}, {ad} offset:{(i>>1)*2048+512}')
def wkv_tr(dst):
    for f in range(16):
        k(f'ds_read_b64_tr_b16 {dst(4*f,2)}, v86 offset:{f*1024}')
        k(f'ds_read_b64_tr_b16 {dst(4*f+2,2)}, v86 offset:{f*1024+128}')
        if f % 4 == 3: k('s_waitcnt lgkmcnt(6)')
def wkv_addr():
    k('v_lshlrev_b32 v86, 3, v84'); k('v_lshl_add_u32 v86, v85, 8, v86'); k(f'v_add_u32 v86, {L_WKV}, v86')
def hilo(r, t, d):
    k(f'v_cvt_pk_bf16_f32 {v(t)}, {v(r)}, {v(r)}'); k(f'v_lshlrev_b32 {v(t)}, 16, {v(t)}'); k(f'v_sub_f32 {v(t)}, {v(r)}, {v(t)}')
    k(f'v_cvt_pk_bf16_f32 {v(d)}, {v(r)}, {v(t)}')
k('v_xor_b32 v76, v84, v7'); k('v_lshlrev_b32 v76, 4, v76'); k('v_lshl_add_u32 v76, v3, 8, v76')
k(f's_lshl_b32 s97, {s(sW)}, 14'); k('v_add_u32 v96, s97, v76')
for ks in range(1, 8): k(f'v_xor_b32 {v(96+ks)}, {32*ks}, v96')
k('v_lshlrev_b32 v76, 4, v84'); k('v_lshl_add_u32 v76, v3, 8, v76'); k('v_lshl_add_u32 v76, v7, 3, v76')
k(f's_and_b32 s97, {s(sJ)}, 1'); k('s_lshl_b32 s97, s97, 1'); k(f's_add_u32 s97, s97, {s(sS)}'); k('s_lshl_b32 s97, s97, 6')
k('v_xor_b32 v76, s97, v76')
k(f's_lshr_b32 s97, {s(sJ)}, 1'); k('s_lshl_b32 s98, s97, 14'); k(f's_lshl_b32 s99, {s(sKH)}, 13'); k('s_add_u32 s98, s98, s99')
k('v_add_u32 v76, s98, v76')
for q in range(1, 4): k(f'v_xor_b32 {v(76+q)}, {16*q}, v76')
k('v_xor_b32 v80, v84, v85'); k('v_lshlrev_b32 v80, 4, v80'); k('v_lshl_add_u32 v80, v84, 8, v80')
k('s_lshl_b32 s97, s97, 12'); k('v_add_u32 v80, s97, v80')
for b in range(1, 4): k(f'v_xor_b32 {v(80+b)}, {64*b}, v80')
wkv_addr()
k(f's_lshl_b32 s97, {s(sW)}, 12'); k('v_add_u32 v87, s97, v86')
k(vm.wait('xd'))
k('s_barrier')
stamp('f_bar')
k(f's_cmp_eq_u32 {s(sKH)}, 0')
k('s_cbranch_scc1 L_f0c')
for i in range(16):
    k(f'ds_read_b128 {v(XF+4*i,4)}, {v(96+i%8)} offset:{(i>>3)*8192}')
    if i == 11: k('s_waitcnt lgkmcnt(8)')
k('s_branch L_f0d')
k.label('L_f0c')
for i in range(16):
    k(f'ds_read_b128 {v(XF+4*i,4)}, {v(96+i%8)} offset:{(1-(i>>3))*8192}')
    if i == 11: k('s_waitcnt lgkmcnt(8)')
k.label('L_f0d')
for i in range(16):
    if i % 4 == 0 and i:
        k(f's_waitcnt lgkmcnt({12-i if i < 12 else 4})')
        if i == 8:
            for q in range(4): k(f'ds_read_b64 {v(66+2*q,2)}, {v(76+q)}')
    A = 44 + 2*(i >> 3)
    wq_next()
    for r in range(4):
        z = (i & 7) == 0 and r == 0
        k(f'v_dot2_f32_bf16 {v(A)}, {v(XF+4*i+r)}, {s(sONE)}, {"0" if z else v(A)}')
        k(f'v_dot2_f32_bf16 {v(A+1)}, {v(XF+4*i+r)}, {v(XF+4*i+r)}, {"0" if z else v(A+1)}')
k('v_permlane32_swap_b32 v44, v45'); k('v_permlane32_swap_b32 v46, v47')
k(f's_lshl_b32 s97, {s(sKH)}, 10'); k(f's_add_u32 s97, s97, {L_X1S}')
k(f'v_lshl_add_u32 v48, {v(vFLG)}, 3, s97')
k(f's_lshl_b32 s97, {s(sW)}, 3')
k('v_lshl_add_u32 v49, v7, 2, v48'); k('v_add_u32 v49, s97, v49'); k('v_xor_b32 v50, 1024, v49')
k('v_add_f32 v44, v44, v45'); k('v_add_f32 v46, v46, v47')
k('ds_write_b32 v50, v44'); k('ds_write_b32 v49, v46')
stamp('f_x')
if JP == 2: job_loads()
k(f's_cmp_eq_u32 {s(sKVW)}, 0')
k('s_cbranch_scc1 L_f0')
k('s_waitcnt lgkmcnt(0)')
for f in range(16):
    k(f'ds_read_b128 {a(64+4*f,4)}, {v(80+(f&3))} offset:{(f>>2)*16384}')
    if f == 11: k('s_waitcnt lgkmcnt(4)')
k('s_waitcnt lgkmcnt(0)')
wkv_tr(a)
k.label('L_f0')
k('s_waitcnt lgkmcnt(0)')
for f in range(4):
    k(f'ds_read_b64_tr_b16 {v(WF+4*f,2)}, v87 offset:{f*1024}')
    k(f'ds_read_b64_tr_b16 {v(WF+4*f+2,2)}, v87 offset:{f*1024+128}')
k(f's_lshl_b32 s97, {s(sW)}, 2'); k(f's_add_u32 s97, s97, {L_CKV}'); k(f'v_add_u32 v54, s97, {v(vL16)}')
k('s_waitcnt lgkmcnt(0)')
for i in range(16):
    k(f'v_dot2_f32_bf16 {v(52+(i&1))}, {v(WF+i)}, {s(sONE)}, {"0" if i<2 else v(52+(i&1))}')
k('v_add_f32 v52, v52, v53')
hilo(52, 53, 55)
k('ds_write_b32 v54, v55')
stamp('f_kvw')
for g in range(5):
    if g < 4:
        k(vm.wait(f'wq{4*g+3}'))
        for i in range(4*g, 4*g+4): wq_tr(i)
    if g:
        k(f's_waitcnt lgkmcnt({8 if g < 4 else 0})')
        for i in range(8*(g-1), 8*g):
            for nn in range(2):
                r = WF + 8*(i>>2) + 4*nn + (i&3)
                k(f'v_dot2_f32_bf16 {v(52+nn)}, {v(r)}, {s(sONE)}, {"0" if i==0 else v(52+nn)}')
k('s_barrier')
k('ds_read_b128 v[56:59], v48'); k('ds_read_b128 v[60:63], v48 offset:16')
hilo(52, 54, 52); hilo(53, 54, 53)
k(f's_lshl_b32 s97, {s(sS)}, 10'); k(f's_lshl_b32 s98, {s(sW)}, 2'); k('s_add_u32 s97, s97, s98'); k(f's_add_u32 s97, s97, {L_CS}')
k(f'v_add_u32 v54, s97, {v(vL16)}'); k('v_xor_b32 v55, 1024, v54')
k('ds_write_b32 v55, v52'); k('ds_write_b32 v54, v53')
k('s_waitcnt lgkmcnt(2)')
k('v_pk_add_f32 v[56:57], v[56:57], v[58:59]'); k('v_pk_add_f32 v[60:61], v[60:61], v[62:63]'); k('v_pk_add_f32 v[56:57], v[56:57], v[60:61]')
emit(finish_stats(56, vRK, vM0))
for q in range(4):
    for i in range(2):
        k(f'v_lshlrev_b32 {v(vXR+4*q+2*i)}, 16, {v(66+2*q+i)}')
        k(f'v_and_b32 {v(vXR+4*q+2*i+1)}, 0xffff0000, {v(66+2*q+i)}')
stamp('f_done')
NPRO = len(SN)
def front1():
    publish_x(0)
    stamp('xpub')
    k(poll_issue(vTMP, sTFL, 0, 'p0'))
    for i in range(16):
        wq_tr(i)
        if i % 4 == 3: k('s_waitcnt lgkmcnt(6)')
    k(f'v_and_b32 v84, 15, {v(vLANE)}'); k(f'v_lshrrev_b32 v85, 4, {v(vLANE)}')
    k(f's_cmp_eq_u32 {s(sKVW)}, 0')
    k('s_cbranch_scc1 L_nokvw')
    wkv_addr()
    wkv_tr(a)
    k(f's_lshr_b32 s97, {s(sJ)}, 1'); k('s_and_b32 s97, s97, 1'); k('s_lshl_b32 s98, s97, 8')
    k('v_lshl_add_u32 v70, v84, 4, s98'); k('v_lshl_add_u32 v70, v85, 9, v70')
    k(f's_and_b32 s98, {s(sXB)}, {0xffffffff ^ 0x7fff}')
    k.label('L_nokvw')
    k(f'v_lshrrev_b32 v7, 5, {v(vLANE)}'); k(f'v_lshlrev_b32 v71, 2, {v(vFLG)}'); k('v_lshl_add_u32 v71, v7, 12, v71')
    k('s_waitcnt lgkmcnt(0)')
    emit(poll_check(vTMP, sTFL, 0, 'p0', None))
    stamp('xpoll')
    for i in range(4):
        vm.issue('st')
        k(f'buffer_load_dwordx4 {v(SR[i],4)}, v71, {s(SWS,4)}, {s(sSTQ)} offen offset:{i*1024} sc1')
    k(f's_cmp_eq_u32 {s(sKVW)}, 0')
    k('s_cbranch_scc1 L_nox16')
    for f in range(16):
        k(f'buffer_load_dwordx4 {a(64+4*f,4)}, v70, {s(SWS,4)}, s98 offen offset:{(f&1)*2048} sc1')
        if f & 1 and f < 15: k('s_add_u32 s98, s98, 4096')
    k.label('L_nox16')
    x_loads(sXA, sXB, 'x')
    k(vm.wait('st'))
    for i in range(4): k(f'v_pk_add_f32 {v(SR[i],2)}, {v(SR[i],2)}, {v(SR[i]+2,2)}')
    k(f'v_pk_add_f32 {v(SR[0],2)}, {v(SR[0],2)}, {v(SR[1],2)}'); k(f'v_pk_add_f32 {v(SR[2],2)}, {v(SR[2],2)}, {v(SR[3],2)}')
    k(f'v_pk_add_f32 {v(SR[0],2)}, {v(SR[0],2)}, {v(SR[2],2)}')
    k(f'v_mov_b32 {v(SR[1])}, {v(SR[0])}'); k(f'v_mov_b32 {v(SR[1]+1)}, {v(SR[0]+1)}')
    k(f'v_permlane32_swap_b32 {v(SR[0])}, {v(SR[1])}'); k(f'v_permlane32_swap_b32 {v(SR[0]+1)}, {v(SR[1]+1)}')
    k(f'v_pk_add_f32 {v(SR[0],2)}, {v(SR[0],2)}, {v(SR[1],2)}')
    emit(finish_stats(SR[0], vRK, vM0))
k.label('L_layer')
for i in range(16): vm.issue(f'x{i}')
k(f's_and_b32 s99, {s(sKFL)}, -128'); k(f's_add_u32 s99, s99, {PFLAG}')
k(poll_issue(vTM2, 99, 0, 'pp'))
for i in range(1, 4): k(f'v_mov_b32 {v(vM0+i)}, {v(vM0)}')
k(f's_cmp_eq_u32 {s(sKVW)}, 0')
k('s_cbranch_scc1 L_qplain')
k('v_mov_b32 v64, v84'); k('v_mov_b32 v65, v85')
k('v_lshrrev_b32 v66, 1, v65'); k('v_and_b32 v67, 1, v65')
k(f's_lshr_b32 s97, {s(sJ)}, 1'); k('s_and_b32 s97, s97, 1')
k('s_lshl_b32 s98, s97, 6')
k('v_lshl_add_u32 v68, v64, 2, s98'); k('v_lshl_add_u32 v69, v65, 4, s98')
k(f'ds_bpermute_b32 v72, v68, {v(vM0)}')
k(f'ds_bpermute_b32 v76, v68, {v(vRK)}')
for r in range(4): k(f'ds_bpermute_b32 {v(80+r)}, v69, {v(vRK)} offset:{4*r}')
k(f'v_add_u32 v88, {L_CKV}, {v(vL16)}')
k('ds_read_b128 v[88:91], v88')
k(f's_bitcmp1_b32 {s(sJ)}, 0')
k('s_cbranch_scc1 L_kv_v')
for f in range(16):
    k(f'v_mfma_f32_16x16x32_bf16 v[84:87], {a(4*f,4)}, {a(64+4*f,4)}, {"0" if f==0 else "v[84:87]"}')
k('s_waitcnt lgkmcnt(0)')
for i in range(1, 4): k(f'v_mov_b32 {v(72+i)}, v72')
k('v_mfma_f32_16x16x32_bf16 v[84:87], v[88:91], v[72:75], v[84:87]')
k('s_lshl_b32 s98, s97, 8')
k('v_lshl_add_u32 v71, v64, 4, s98'); k('v_lshl_add_u32 v71, v67, 9, v71'); k('v_lshl_add_u32 v71, v66, 3, v71')
for r in range(4): k(f'v_mul_f32 {v(84+r)}, v76, {v(84+r)}')
k('s_branch L_kv_st')
k.label('L_kv_v')
k.settle(2)
for f in range(16):
    k(f'v_mfma_f32_16x16x32_bf16 v[84:87], {a(64+4*f,4)}, {a(4*f,4)}, {"0" if f==0 else "v[84:87]"}')
k('s_waitcnt lgkmcnt(0)')
for i in range(1, 4): k(f'v_mov_b32 {v(72+i)}, v72')
k('v_mfma_f32_16x16x32_bf16 v[84:87], v[72:75], v[88:91], v[84:87]')
k('s_lshl_b32 s98, s97, 9'); k('s_add_u32 s98, s98, 4096')
k('v_lshl_add_u32 v71, v64, 4, s98'); k('v_lshl_add_u32 v71, v66, 8, v71'); k('v_lshl_add_u32 v71, v67, 3, v71')
for r in range(4): k(f'v_mul_f32 {v(84+r)}, {v(80+r)}, {v(84+r)}')
k.label('L_kv_st')
k(f'v_cvt_pk_bf16_f32 {v(vFL)}, v84, v85')
k(f'v_cvt_pk_bf16_f32 {v(vFL+1)}, v86, v87')
k(f'v_mov_b32 {v(vFL+2)}, v71')
k(f's_add_u32 s98, {s(sKVS)}, {KVL-KVG}')
k(f's_add_u32 s97, {s(sKFL)}, {s(sGFL)}')
k('s_waitcnt vmcnt(0)')
k(f'buffer_store_dwordx2 {v(vFL,2)}, {v(vFL+2)}, {s(SWS,4)}, s98 offen')
k(f'buffer_store_dwordx2 {v(vFL,2)}, {v(vFL+2)}, {s(SWS,4)}, {s(sKVS)} offen sc1')
n0 = vm.n
gemm4('x', waits=False, hook_mid=['s_waitcnt vmcnt(1)'] + flag_store(97, LFLAG-GFLAG, ''))
vm.n = n0
k('s_branch L_qjoin')
k.label('L_qplain')
k.settle(2)
gemm4('x')
k('s_waitcnt vmcnt(0)')
k.label('L_qjoin')
k(f'v_cmp_ne_u32 vcc, {v(vEPO)}, {v(vTM2)}')
k(f's_lshl_b32 s97, {s(sS)}, 10'); k(f's_add_u32 s97, s97, {L_CS}'); k(f'v_add_u32 v3, s97, {v(vL16)}')
k('s_cmp_eq_u64 vcc, 0')
k(f's_cselect_b32 s98, {KVL-KVG}, 0'); k(f's_cselect_b32 s99, {LFLAG-GFLAG}, 0')
if FORCE_SLOW: k('s_mov_b32 s98, 0'); k('s_mov_b32 s99, 0')
k(f's_add_u32 s98, s98, {s(sKVB)}')
k(f's_and_b32 s97, {s(sKFL)}, -128'); k('s_add_u32 s99, s99, s97'); k(f's_add_u32 s99, s99, {s(sGFL)}')
k(f's_cmp_lg_u32 {s(sL)}, 0')
k('s_cbranch_scc1 L_nojob')
k(f's_lshl_b32 s97, {s(sW)}, 12'); k(f's_add_u32 s97, s97, {L_WQ}'); k(f'v_add_u32 {v(vT)}, s97, {v(vL16)}')
for i in range(4): k(f'ds_write_b128 {v(vT)}, {v(SR[i],4)} offset:{i*1024}')
k.label('L_nojob')
k('s_waitcnt lgkmcnt(0)')
k('s_barrier')
T3 = ACC + 48
k(f'ds_read_b128 {v(vFL,4)}, v3')
emit(red_read(XF))
k(f's_cmp_eq_u32 {s(sS)}, 0')
k('s_cbranch_scc1 L_noa0')
k(poll_issue(vTMP, 99, 0, 'pa'))
k.label('L_noa0')
k('s_waitcnt lgkmcnt(12)')
k(mfma(T3, v(vFL,4), v(vM0,4)))
k(f'v_mul_f32 {v(vRK)}, 0x3eb8aa3b, {v(vRK)}')
k('s_waitcnt lgkmcnt(4)')
for i in range(8): k(f'v_pk_add_f32 {v(XF+2*i,2)}, {v(XF+2*i,2)}, {v(XF+16+2*i,2)}')
k('s_waitcnt lgkmcnt(0)')
for i in range(8): k(f'v_pk_add_f32 {v(XF+2*i,2)}, {v(XF+2*i,2)}, {v(XF+32+2*i,2)}')
for i in range(8): k(f'v_pk_add_f32 {v(XF+2*i,2)}, {v(XF+2*i,2)}, {v(T3+2*i,2)}')
for i in range(8): k(f'v_pk_mul_f32 {v(XF+2*i,2)}, {v(XF+2*i,2)}, {v(vRK,2)} op_sel_hi:[1,0]')
emit(pack_tile(XF, QA))
stamp('Q')
k(f's_cmp_eq_u32 {s(sS)}, 0')
k('s_cbranch_scc1 L_noa')
k(f's_lshl_b32 m0, {s(sW)}, 12')
emit(poll_check(vTMP, 99, 0, 'pa', None))
k(f'v_cmp_ne_u32 vcc, {s(sFV)}, {v(vTMP)}')
for i in range(4):
    k(f'buffer_load_dwordx4 {v(vL16)}, {s(SWS,4)}, s98 offen offset:{i*1024} sc1 lds')
k('s_sub_u32 m0, m0, 4096'); k('s_sub_u32 s98, s98, 4096')
for i in range(4):
    k(f'buffer_load_dwordx4 {v(vL16)}, {s(SWS,4)}, s98 offen offset:{i*1024} sc1 lds')
k(f's_and_b32 s97, {s(sTEAM)}, 3'); k('s_lshl_b32 s97, s97, 3'); k('s_lshr_b32 s97, vcc_lo, s97')
k('s_and_b32 s97, s97, 0xff'); k('s_cselect_b32 s97, 0, 1')
if FORCE_SLOW: k('s_mov_b32 s97, 0')
k('v_mov_b32 v3, s97'); k(f'v_mov_b32 v7, {L_FW}')
k('ds_write_b32 v7, v3')
k.label('L_noa')
k(f's_cmp_eq_u32 {s(sKVW)}, 0')
k('s_cbranch_scc1 L_nog')
k(f's_add_u32 s97, {s(sKFL)}, {s(sGFL)}')
k('s_waitcnt vmcnt(1)')
n0 = vm.n; emit(flag_store(97, 0, 'sc1')); vm.n = n0
k.label('L_nog')
stamp('stgA_poll')
k(f's_cmp_lg_u32 {s(sL)}, 0')
k('s_cbranch_scc1 L_nojob2')
for i in range(4):
    k(f'ds_read_b64_tr_b16 {v(SR[i],2)}, {v(vR0)} offset:{i*2048}')
    k(f'ds_read_b64_tr_b16 {v(SR[i]+2,2)}, {v(vR1)} offset:{i*2048}')
k('s_waitcnt lgkmcnt(0)')
for i in range(4):
    k(f'buffer_store_dwordx4 {v(SR[i],4)}, {v(vL16)}, {s(SWS,4)}, s100 offen offset:{i*1024} sc1')
for i in range(16):
    k(f'v_dot2_f32_bf16 v70, {v(SR[i>>2]+(i&3))}, {s(sONE)}, {"0" if i==0 else "v70"}')
k('v_mov_b32 v71, v70')
k('v_permlane32_swap_b32 v70, v71')
k('v_add_f32 v70, v70, v71')
hilo(70, 71, 108)
k(f'v_lshlrev_b32 v71, 2, {v(vFLG)}')
k(f'buffer_store_dword v108, v71, {s(SWS,4)}, s101 offen sc1')
k.label('L_nojob2')
k(f'v_and_b32 {v(vR0)}, 15, {v(vLANE)}'); k(f'v_lshlrev_b32 {v(vR0)}, 7, {v(vR0)}')
k(f'v_min_u32 {v(vR1)}, 55, {v(vLANE)}'); k(f'v_lshlrev_b32 {v(vR1)}, 7, {v(vR1)}')
k(f's_and_b32 s97, {s(sTEAM)}, 3'); k(f's_mul_i32 s97, s97, {7*1024}'); k(f'v_add_u32 {v(vR1)}, s97, {v(vR1)}')
k(f'v_mov_b32 {v(vIDX)}, 0xdddd')
k(f'v_and_b32 v64, 15, {v(vLANE)}'); k(f'v_lshrrev_b32 v65, 5, {v(vLANE)}')
k('v_lshlrev_b32 v64, 4, v64'); k('v_lshl_add_u32 v64, v65, 8, v64')
k(f'v_and_b32 v65, 16, {v(vLANE)}'); k('v_cmp_eq_u32 vcc, 0, v65')
k(f'v_mov_b32 v66, {L_ONES}'); k('v_mov_b32 v67, 4096'); k('v_cndmask_b32 v66, v66, v67, vcc')
k(f'v_add_u32 {v(vVA0)}, v64, v66')
k('v_mov_b32 v67, 8192'); k(f'v_cndmask_b32 {v(vVI)}, 0, v67, vcc')
k(f'v_mov_b32 {v(vVA)}, {v(vVA0)}')
k(f'v_mov_b32 {v(vKA)}, {v(vL16)}')
for i in range(32): k(f'v_mov_b32 {v(OA+i)}, 0')
k(f's_mov_b32 {s(sRETRY)}, 0')
k(f's_mov_b32 s96, {RFLAG}')
k(f's_lshl_b32 s95, {s(sW)}, 12')
k(f'v_mov_b32 v7, {L_FW}')
k(f's_cmp_eq_u32 {s(sS)}, 0')
k('s_cbranch_scc1 L_noa2')
k('s_waitcnt vmcnt(5) lgkmcnt(0)')
k(f's_cmp_eq_u32 {s(sL)}, 0')
k('s_cbranch_scc1 L_noa2')
k('s_waitcnt vmcnt(0)')
k.label('L_noa2')
k('s_barrier')
stamp('stgA_bar')
k(f'ds_read_b128 {v(KB,4)}, {v(vKA)}')
k(f'ds_read_b128 {v(KB+4,4)}, {v(vKA)} offset:1024')
k(f'ds_read_b128 {v(VLO,4)}, {v(vVA)}')
k(f'ds_read_b128 {v(VHI,4)}, {v(vVA)} offset:512')
k(f'ds_read_b32 {v(vFW)}, v7')
k(poll4_issue(sGFL, 'pg'))
k('s_waitcnt lgkmcnt(4)')
k(mfma(S0, v(KB,4), v(QA,4), '0'))
k(mfma(S1, v(KB,4), v(QB,4), '0'))
def rowmax(M, S, first):
    L = []
    for i in range(8):
        if first and i == 0: L.append(f'v_max_f32 {v(M)}, {v(S)}, {v(S+1)}')
        else: L.append(f'v_max3_f32 {v(M)}, {v(M)}, {v(S+2*i)}, {v(S+2*i+1)}')
    return L
def cinit():
    k(f'v_mov_b32 v3, {v(vMA)}'); k(f'v_mov_b32 v7, {v(vMB)}')
    k(f'v_permlane32_swap_b32 v3, {v(vMA)}'); k(f'v_permlane32_swap_b32 v7, {v(vMB)}')
    k(f'v_max_f32 v3, v3, {v(vMA)}'); k(f'v_max_f32 v7, v7, {v(vMB)}')
    for i in range(16): k(f'v_sub_f32 {v(CA+i)}, 0, v3')
    k('s_waitcnt lgkmcnt(0)')
    k(mfma(S0, v(KB,4), v(QA,4), v(CA,16)))
    for i in range(16): k(f'v_sub_f32 {v(CB+i)}, 0, v7')
emit(rowmax(vMA, S0, True)); emit(rowmax(vMB, S1, True))
cinit()

def att_tile(t, first, last, koff, voff, vadd, kadd, hooks):
    L = []
    b = 4*(t & 1); nb = 4*((t+1) & 1)
    ex = lambda S, i: L.append(f'v_exp_f32 {v(S+i)}, {v(S+i)}')
    smf = lambda O, A, B: L.append(f'v_smfmac_f32_32x32x32_bf16 {v(O,16)}, {v(A,4)}, {v(B,8)}, {v(vIDX)}')
    ex(S0,0); ex(S0,1)
    if not first: smf(OB, VHI+nb, S1+8)
    for i in range(2,6): ex(S0,i)
    L.append(mfma(S1, v(KB+b,4), v(QB,4), v(CB,16)))
    L += hooks.get(0, [])
    if kadd and kadd[0] == 'pre': L.append(kadd[1])
    if koff is not None: L.append(f'ds_read_b128 {v(KB+b,4)}, {v(vKA)} offset:{koff}')
    if kadd and kadd[0] == 'post': L.append(kadd[1])
    if vadd: L.append(f'v_add_u32 {v(vVA)}, {v(vVI)}, {v(vVA)}')
    ex(S0,6); ex(S0,7)
    if voff is not None: L.append(f'ds_read_b128 {v(VLO+nb,4)}, {v(vVA)} offset:{voff}')
    ex(S0,8); ex(S0,9)
    smf(OA, VLO+b, S0)
    if voff is not None: L.append(f'ds_read_b128 {v(VHI+nb,4)}, {v(vVA)} offset:{voff+512}')
    for i in range(10,13): ex(S0,i)
    L += hooks.get(1, [])
    for i in range(13,16): ex(S0,i)
    ex(S1,0); ex(S1,1)
    smf(OA, VHI+b, S0+8)
    for i in range(2,6): ex(S1,i)
    if not last: L.append(mfma(S0, v(KB+nb,4), v(QA,4), v(CA,16)))
    ex(S1,6); ex(S1,7)
    L += hooks.get(2, [])
    ex(S1,8); ex(S1,9)
    smf(OB, VLO+b, S1)
    L.append('s_waitcnt lgkmcnt(0)')
    ex(S1,10); ex(S1,11); ex(S1,12)
    L += hooks.get(3, [])
    for i in range(13,16): ex(S1,i)
    return L

def isize(t):
    if t.endswith(':'): return 0
    I = Ins(t); mn = I.mn
    if I.is_mfma or I.is_ds or I.is_vmem or mn.endswith('_e64'): return 8
    lit = False
    for o in I.ops:
        try:
            x = int(o, 0); lit = lit or not (-16 <= x <= 64)
        except ValueError: pass
    if mn.startswith(('s_waitcnt', 's_barrier', 's_nop', 's_cbranch', 's_branch', 's_movk', 's_setpc')): return 4
    if mn in ('v_or3_b32', 'v_max3_f32', 'v_fma_f32', 'v_lshl_add_u32', 'v_cvt_pk_bf16_f32'): return 8
    return 8 if lit else 4
def align8(L):
    pos = 0; lastexp = None
    for i, t in enumerate(L):
        z = isize(t)
        if z == 8:
            if pos % 8 and lastexp is not None:
                L[lastexp] = L[lastexp].replace('v_exp_f32 ', 'v_exp_f32_e64 '); pos += 4
            lastexp = None
        elif t.startswith('v_exp_f32 '): lastexp = i
        pos += z
    return L

HK = {}
def hook(t, slot, L): HK.setdefault(t, {}).setdefault(slot, []).extend(L)
GC = opt('gc', 1)
hook(GC, 3, stampL('a_pre', True) + poll4_check(sGFL, 'pg') + stampL('a_gchk', True))
pos = [(t, sl) for t in range(64) for sl in range(4)]
p = pos.index((GC+1, 0))
for i in range(1, 8):
    for f in range(4):
        L = []
        if f == 0: L = [f's_add_u32 m0, s95, {i*16384}', f's_xor_b32 s94, {s(sKVB)}, {i<<14}']
        vm.issue(f'kb{i}')
        L.append(f'buffer_load_dwordx4 {v(vL16)}, {s(SWS,4)}, s94 offen offset:{f*1024} sc1 lds')
        if pos[p] == (6, 0):
            hook(6, 0, ['@kb1', 's_barrier']); n6 = vm.n - 1
        hook(*pos[p], L); p += 1
if 'n6' not in globals() or not any('@kb1' in x for x in HK.get(6, {}).get(0, [])):
    hook(6, 0, [vm.wait('kb1'), 's_barrier'])
else:
    HK[6][0][HK[6][0].index('@kb1')] = f's_waitcnt vmcnt({n6 - vm.tags["kb1"]})'
assert p <= pos.index((13, 0))
n0 = vm.n
lbr = k.newlabel('L_nor')
hook(9, 2, [f's_or_b32 s97, {s(sL)}, {s(sW)}', f's_cbranch_scc1 {lbr}', f's_add_u32 s97, {s(sKFL)}, {RFLAG}'] + flag_store(97, 0, 'sc1') + [lbr + ':'])
vm.n = n0
RC = opt('rc', 15)
hook(14, 0, stampL('a_t14', True) + [vm.wait('kb7'), 's_barrier'])
hook(RC, 1, [poll4_issue(96, 'pr')])
hook(RC+2, 1, poll4_check(96, 'pr') + stampL('a_rchk', True))
def touch(ad, sreg, add=0):
    L = [f's_add_u32 s94, {s(sreg)}, {add}'] if add else []
    return L + [f'buffer_load_dword {v(vT)}, {v(ad)}, {s(SWS,4)}, {"s94" if add else s(sreg)} offen sc1']
TCH = [touch(vR0, sXP, OQ-XP), touch(vR0, sXP), touch(vR0, sHP), touch(vR0, sHP+1), touch(vR0, sHP, 112*1024), touch(vR0, sHP+1, 112*1024)]
if '--nopt' not in ARG:
    for i, x in enumerate(TCH): hook(RC + 4 + 4*i, 2, x)
if '--now2t' not in ARG:
    hook(opt('w2t', 46), 2, touch(vR1, sW2)); hook(opt('w2t', 46) + 5, 2, touch(vR1, sW2+1))
hook(58, 0, stampL('a_t58', True))
pf = []
for ks in range(8):
    for nn in range(2): pf.append((v(WF+8*ks+4*nn,4), sWO+nn, ks))
for st in range(2):
    for i in range(32): pf.append((a(128*st+4*i,4), sW1+5*st+i//8, i%8))
    pf.append((v(CS1+4*st,4), sW1+5*st+4, 0))
PF0 = RC + 3
slots = [(t, sl) for t in range(PF0, 62) for sl in ((0, 1, 2, 3) if opt('pf4', 0) else (1, 3))]
assert len(slots) >= len(pf)
for x, sl in zip(pf, slots): hook(*sl, [ld(*x, tag='pf')])
AL = []
for t in range(64):
    t2 = t + 2
    koff = ((t2 >> 2) & 7)*8192 + (t2 & 3)*1024 if t2 < 64 else None
    kadd = ('pre', f'v_add_u32 {v(vKA)}, 0x10000, {v(vKA)}') if t2 == 32 else None
    voff = ((t+1) & 3)*1024 if t < 63 else None
    AL += att_tile(t, t == 0, t == 63, koff, voff, (t & 3) == 3 and t < 63, kadd, HK.get(t, {}))
k.raw('.p2align 3')
nb4 = k.nops_inserted
emit(align8(AL))
print('nops in attention:', k.nops_inserted - nb4, file=sys.stderr)
k.label('L_att_fin')
k(f'v_smfmac_f32_32x32x32_bf16 {v(OB,16)}, {v(VHI+4,4)}, {v(S1+8,8)}, {v(vIDX)}')
stamp('att')
k(f'v_readfirstlane_b32 {s(sFAST)}, {v(vFW)}')
k(f'v_rcp_f32 {v(S0)}, {v(OA+8)}')
k(f's_add_u32 s97, {s(sXP)}, {OQ-XP}')
for i in range(8): k(f'v_mul_f32 {v(OA+i)}, {v(S0)}, {v(OA+i)}')
for i in range(4): k(f'v_cvt_pk_bf16_f32 {v(S0+4+i)}, {v(OA+2*i)}, {v(OA+2*i+1)}')
k(f'v_rcp_f32 {v(S0+1)}, {v(OB+8)}')
for i in range(8): k(f'v_mul_f32 {v(OB+i)}, {v(S0+1)}, {v(OB+i)}')
for i in range(4): k(f'v_cvt_pk_bf16_f32 {v(S0+8+i)}, {v(OB+2*i)}, {v(OB+2*i+1)}')
emit(two_ways(lambda fl: [st4(S0+4, 97, 0, fl), st4(S0+8, 97, 1024, fl)]))
k(f'v_mul_f32 {v(S0+2)}, 0x5f800000, {v(OA+8)}')
k(f'v_mul_f32 {v(S0+3)}, 0x5f800000, {v(OB+8)}')
k(f'v_mul_f32 {v(S0+2)}, 0, {v(S0+2)}')
k(f'v_fma_f32 {v(S0+2)}, {v(S0+3)}, 0, {v(S0+2)}')
for i in range(8):
    k(f'v_fma_f32 {v(S0+2)}, {v(OA+i)}, 0, {v(S0+2)}')
    k(f'v_fma_f32 {v(S0+2)}, {v(OB+i)}, 0, {v(S0+2)}')
k(f'v_cmp_u_f32 vcc, {v(S0+2)}, {v(S0+2)}')
if FORCE_RETRY: k('s_mov_b64 vcc, 1')
k('s_cbranch_vccnz L_att_retry')
k.label('L_att_ok')
k(f's_add_u32 s98, {s(sXA)}, {OQ-XP}'); k(f's_add_u32 s99, {s(sXB)}, {OQ-XP}')
k('s_waitcnt vmcnt(0)')
emit(two_ways(lambda fl: flag_store(sMYF, 128, fl)))
stamp('opub')
k(f's_cmp_lg_u32 {s(sL)}, 0')
k('s_cbranch_scc1 L_nowq')
k('s_barrier')
n0 = vm.n
for g in wq_dma(): emit(g())
vm.n = n0
k.label('L_nowq')
k(poll_issue(vTMP, sTFL, 128, 'p1'))
emit(poll_check(vTMP, sTFL, 128, 'p1', sMASK))
stamp('opoll')
x_loads(98, 99, 'o')
gemm4('o', cinit=v(vXR,16))
k('s_waitcnt lgkmcnt(0)')
k('s_barrier')
emit(red_read(XF))
k('s_waitcnt lgkmcnt(4)')
for i in range(8): k(f'v_pk_add_f32 {v(XF+2*i,2)}, {v(XF+2*i,2)}, {v(XF+16+2*i,2)}')
k('s_waitcnt lgkmcnt(0)')
for i in range(8): k(f'v_pk_add_f32 {v(XF+2*i,2)}, {v(XF+2*i,2)}, {v(XF+32+2*i,2)}')
for i in range(8): k(f'v_pk_add_f32 {v(vXR+2*i,2)}, {v(XF+2*i,2)}, {v(T3+2*i,2)}')
stamp('oproj')
publish_x(2)
stamp('x1pub')
k(poll_issue(vTMP, sTFL, 256, 'p2'))
k(f's_and_b32 s98, {s(sXB)}, {0xffffffff ^ 0x8000}')
k(f's_lshl_b32 s97, {s(sW)}, 13')
k(f's_and_b32 s99, {s(sSTQ)}, -1024'); k(f's_lshl_b32 s96, {s(sW)}, 11'); k('s_add_u32 s99, s99, s96')
k('s_mov_b32 m0, s97')
emit(poll_check(vTMP, sTFL, 256, 'p2', None))
stamp('x1poll')
def dma1(sreg, off, tag=None):
    vm.issue(tag)
    return f'buffer_load_dwordx4 {v(vL16)}, {s(SWS,4)}, {s(sreg)} offen offset:{off} sc1 lds'
if STAMP: k('s_mov_b32 m0, s97')
for i in range(4): k(dma1(98, i*1024))
k('s_add_u32 m0, m0, 4096'); k('s_add_u32 s98, s98, 4096')
for i in range(4): k(dma1(98, i*1024))
k(f's_add_u32 m0, s96, {L_X1S}')
k(f's_add_u32 s98, s98, {32768-4096}')
for i in range(2): k(dma1(99, i*1024, 'xa'))
k(f's_add_u32 m0, s97, 32768')
for i in range(4): k(dma1(98, i*1024))
k('s_add_u32 m0, m0, 4096'); k('s_add_u32 s98, s98, 4096')
for i in range(4): k(dma1(98, i*1024, 'xb'))
U = [ACC+16*i for i in range(4)]
RING = 108; NR = 6; SIL = 132; W2A = 148
def w2frag(i, nn):
    return v(W2A + 8*i + 4*nn, 4) if i < 12 else a(8*(i-12) + 4*nn, 4)
def hfrag(m, i):
    return a(128 + 4*((28*m + i) % 32), 4)
k(f's_mov_b32 s92, {s(sW2)}'); k(f's_mov_b32 s93, {s(sW2+1)}')
def w2_load(i, nn):
    L = []
    if i and i % 8 == 0: L.append(f's_add_u32 s{92+nn}, s{92+nn}, 8192')
    return L + [ld(w2frag(i, nn), 92+nn, i % 8, f'w2_{i}_{nn}')]
def h_load(m, i):
    L = []
    if i == 0: L.append(f's_add_u32 s94, {s(sHL)}, {m*112*1024}')
    elif i % 8 == 0: L.append('s_add_u32 s94, s94, 8192')
    return L + [ld(hfrag(m, i), 94, i % 8, f'h{m}_{i}')]
def cost(t):
    if t.endswith(':'): return 0
    return 8 if t.startswith(('v_exp', 'v_rcp', 'v_rsq')) else 4
def silu_items(A, m, st):
    It = []
    R = vR0 + m
    for g in range(0, 16, 4):
        It += [[f'v_mul_f32 {v(SIL+i)}, {v(R)}, {v(A+i)}'] for i in range(g, g+4)]
        It += [[f'v_exp_f32 {v(SIL+i)}, {v(SIL+i)}'] for i in range(g, g+4)]
        It += [[f'v_add_f32 {v(SIL+i)}, 1.0, {v(SIL+i)}'] for i in range(g, g+4)]
        It += [[f'v_rcp_f32 {v(SIL+i)}, {v(SIL+i)}'] for i in range(g, g+4)]
        It += [[f'v_mul_f32 {v(SIL+i)}, {v(SIL+i)}, {v(A+i)}'] for i in range(g, g+4)]
        It += [[f'v_cvt_pk_bf16_f32 {v(A+i//2)}, {v(SIL+i)}, {v(SIL+i+1)}'] for i in range(g, g+4, 2)]
    return It
def h_store(A, m, st):
    def f(fl): return [st4(A, 95, 0, fl), st4(A+4, 95, 1024, fl, f'hs{m}{st}')]
    return lambda: [f's_add_u32 s95, {s(sHP+st)}, {m*112*1024}'] + two_ways(f)
def run(steps, queues, budget):
    for i, stp in enumerate(steps):
        used = stp()
        prog = True
        while prog and used < budget:
            prog = False
            for q in queues:
                if q and q[0][0] <= i and used < budget:
                    it = q.pop(0)[1]
                    if callable(it): it = it()
                    emit(it); used += sum(cost(x) for x in it); prog = True
    for q in queues:
        while q:
            it = q.pop(0)[1]
            if callable(it): it = it()
            emit(it)
seq = [(sg, i) for sg in range(4) for i in range(33)]
rd = [x for x in seq if x[1] < 32]
state = {'issued': 0, 'done': 0}
def issue_rd():
    n = state['issued']
    if n >= len(rd): return 0
    sg, i = rd[n]
    if sg == 2 and i == 0:
        k(vm.wait('xb')); k('s_barrier')
    k(f'ds_read_b128 {v(RING+4*(n%NR),4)}, {v(vL16)} offset:{(sg>>1)*32768 + i*1024}')
    state['issued'] += 1
    return 4
def up_step(sg, i):
    def f():
        st = sg & 1; m = sg >> 1
        if i == 0 and sg: stamp(f'u_seg{sg-1}', True)
        if i < 32:
            n = state['done']; state['done'] += 1
            k(f's_waitcnt lgkmcnt({state["issued"] - n - 1})')
            k(mfma(U[sg], a(128*st+4*i,4), v(RING+4*(n%NR),4), '0' if i == 0 else None))
            return 4 + issue_rd()
        k(mfma(U[sg], v(CS1+4*st,4), v(vM0+4*m,4)))
        return 0
    return f
k(vm.wait('xa'))
k('s_barrier')
stamp('x1dma')
TS = U[2]
k(f'v_add_u32 v3, {L_X1S}, {v(vL16)}')
for j in range(8): k(f'ds_read_b128 {v(TS+4*j,4)}, v3 offset:{j*1024}')
for _ in range(4): issue_rd()
SI = []
n = 16
while n > 1:
    n //= 2
    for i in range(n):
        SI += [[f'v_add_f32 {v(TS+2*i)}, {v(TS+4*i)}, {v(TS+4*i+2)}', f'v_add_f32 {v(TS+2*i+1)}, {v(TS+4*i+1)}, {v(TS+4*i+3)}']]
SI += [[x] for x in finish_stats(TS, vR1, vM1)]
SI += [[f'v_mov_b32 {v(vR0)}, {v(vR1)}', f'v_mov_b32 {v(vM0)}, {v(vM1)}'],
       [f'v_permlane32_swap_b32 {v(vR0)}, {v(vR1)}', f'v_permlane32_swap_b32 {v(vM0)}, {v(vM1)}'],
       [f'v_cndmask_b32 {v(vRK)}, {v(vR0)}, {v(vR1)}, {s(sKHM,2)}']]
SI += [[f'v_mov_b32 {v(vM0+i)}, {v(vM0)}', f'v_mov_b32 {v(vM1+i)}, {v(vM1)}'] for i in range(1, 4)]
SI += [[f'v_mul_f32 {v(vR0)}, 0xbfb8aa3b, {v(vR0)}', f'v_mul_f32 {v(vR1)}, 0xbfb8aa3b, {v(vR1)}']]
qV = [(1, x) for x in SI]
qV += [(35, x) for x in silu_items(U[0], 0, 0)] + [(35, h_store(U[0], 0, 0))]
qV += [(68, x) for x in silu_items(U[1], 0, 1)] + [(68, h_store(U[1], 0, 1))]
FL0 = opt('fl0', 110); PI0 = opt('pi0', 118); PC0 = opt('pc0', 130); HW = opt('hw', 10)
q3 = [(101, x) for x in silu_items(U[2], 1, 0)] + [(101, h_store(U[2], 1, 0))]
qV += q3
qM = []
for i in range(12):
    for nn in range(2): qM.append((2 + 5*i + 2*nn, (lambda i=i, nn=nn: w2_load(i, nn))))
for i in range(12, 28):
    for nn in range(2): qM.append((67 + opt('w2r', 2)*(2*(i-12) + nn), (lambda i=i, nn=nn: w2_load(i, nn))))
qM.append((FL0, lambda: stampL('u_fl0a', True) + [vm.wait('hs01')] + two_ways(lambda fl: flag_store(sMYF, 384, fl)) + stampL('u_fl0b', True)))
qM.append((PI0, lambda: [poll_issue(vTMP, sTFL, 384, 'p3')]))
qM.append((PC0, lambda: stampL('u_pc0a', True) + poll_check(vTMP, sTFL, 384, 'p3', sMASK) + stampL('u_pc0b', True)))
qM.sort(key=lambda x: x[0])
for i in range(HW): qM.append((max(PC0, 99 + i + 1), (lambda i=i: h_load(0, i))))
run([up_step(*x) for x in seq], [qM, qV], opt('bud', 22))
stamp('up')
def dn_step(m, i, nn):
    def f():
        c = 0
        if nn == 0:
            k(vm.wait(f'h{m}_{i}')); c = 4
        k(mfma(U[2*m+nn], w2frag(i, nn), hfrag(m, i), '0' if i == 0 else None))
        return c
    return f
emit(sum(silu_items(U[3], 1, 1), [])); emit(h_store(U[3], 1, 1)())
FL1 = opt('fl1', 18); PI1 = opt('pi1', 24); PC1 = opt('pc1', 42)
qM = [(FL1, lambda: [vm.wait('hs11')] + two_ways(lambda fl: flag_store(sMYF, 512, fl))),
      (PI1, lambda: [poll_issue(vTMP, sTFL, 512, 'p4')]),
      (PC1, lambda: stampL('d_pc1a', True) + poll_check(vTMP, sTFL, 512, 'p4', sMASK) + stampL('d_pc1b', True))]
for i in range(HW, 28): qM.append((2*(i-HW), (lambda i=i: h_load(0, i))))
qM.sort(key=lambda x: x[0])
for i in range(28): qM.append((max(PC1, 2*(i-4) + 2), (lambda i=i: h_load(1, i))))
run([dn_step(0, i, nn) for i in range(28) for nn in range(2)], [qM], 24)
stamp('dn0')
lb0 = k.newlabel('L_w0'); lb1 = k.newlabel('L_w1')
k(f'v_cndmask_b32 v3, {v(vRW)}, {v(vRW+2)}, {s(sKHM,2)}')
k(f'v_cndmask_b32 v7, {v(vRW+2)}, {v(vRW)}, {s(sKHM,2)}')
qR = [(3+2*i, [f'ds_write_b128 v3, {v(U[0]+4*i,4)} offset:{i*1024}']) for i in range(4)]
qR += [(12, [f's_cmp_eq_u32 {s(sKH)}, 0', f's_cbranch_scc1 {lb0}'] + red_write(U[1], 2) + [lb0 + ':'])]
steps = [dn_step(1, i, nn) for i in range(28) for nn in range(2)]
run(steps, [qR], 24)
for i in range(4): k(f'ds_write_b128 v7, {v(U[2]+4*i,4)} offset:{i*1024}')
k(f's_cmp_lg_u32 {s(sKH)}, 0'); k(f's_cbranch_scc1 {lb1}')
emit(red_write(U[3], 2))
k.label(lb1)
k('s_waitcnt lgkmcnt(0)')
k('s_barrier')
emit(red_read(XF))
for i in range(16): k(f'v_cndmask_b32 {v(U[3]+i)}, {v(U[1]+i)}, {v(U[3]+i)}, {s(sKHM,2)}')
k('s_waitcnt lgkmcnt(4)')
for i in range(8): k(f'v_pk_add_f32 {v(XF+2*i,2)}, {v(XF+2*i,2)}, {v(XF+16+2*i,2)}')
k('s_waitcnt lgkmcnt(0)')
for i in range(8): k(f'v_pk_add_f32 {v(XF+2*i,2)}, {v(XF+2*i,2)}, {v(XF+32+2*i,2)}')
for i in range(8): k(f'v_pk_add_f32 {v(XF+2*i,2)}, {v(XF+2*i,2)}, {v(U[3]+2*i,2)}')
for i in range(8): k(f'v_pk_fma_f32 {v(vXR+2*i,2)}, {v(XF+2*i,2)}, {v(vRK,2)}, {v(vXR+2*i,2)} op_sel_hi:[1,0,1]')
stamp('dn1')
k(f's_add_u32 {s(sL)}, {s(sL)}, 1')
k(f's_add_u32 {s(sTFL)}, {s(sTFL)}, {NPH*128}'); k(f's_add_u32 {s(sMYF)}, {s(sMYF)}, {NPH*128}')
k(f's_add_u32 {s(sKVB)}, {s(sKVB)}, {128*1024}'); k(f's_add_u32 {s(sKVS)}, {s(sKVS)}, {128*1024}')
k(f's_add_u32 {s(sGFL)}, {s(sGFL)}, 1024')
NEND = len(SN)
k(f's_cmp_ge_u32 {s(sL)}, {opt("nl", 2)}')
k('s_cbranch_scc1 L_final')
front1()
if STAMP: k(f's_add_u32 {s(sSTI)}, {s(sSTI)}, {len(SN) - NPRO}')
k.settle(2)
k('s_branch L_layer')
k.label('L_final')
emit(pack_tile(vXR, ACC)); emit(swap_nat(ACC))
k(f's_mov_b32 {s(SRC)}, {s(sOUT)}'); k(f's_mov_b32 {s(SRC+1)}, {s(sOUT+1)}'); k(f's_mov_b32 {s(SRC+2)}, {2048*1024}')
k(f'v_lshrrev_b32 v7, 5, {v(vLANE)}')
k(f'v_lshlrev_b32 v3, 8, {v(vFLG)}'); k('v_lshl_add_u32 v3, v7, 4, v3')
k(f's_lshl_b32 s97, {s(sKH)}, 15'); k(f's_lshl_b32 s98, {s(sTEAM)}, 16'); k('s_add_u32 s97, s97, s98')
k(f's_lshl_b32 s98, {s(sJ)}, 7'); k('s_add_u32 s97, s97, s98')
k(f's_lshl_b32 s98, {s(sS)}, 6'); k('s_add_u32 s97, s97, s98')
k(f'buffer_store_dwordx4 {v(ACC,4)}, v3, {s(SRC,4)}, s97 offen')
k(f'buffer_store_dwordx4 {v(ACC+4,4)}, v3, {s(SRC,4)}, s97 offen offset:32')
k(f's_or_b32 s97, s2, {s(sW)}')
k('s_cbranch_scc1 L_ep_done')
k('s_mov_b32 s97, 0')
n0 = vm.n; emit(flag_store(97, 0, 'sc1')); vm.n = n0
k.label('L_ep_done')
if STAMP:
    k('s_waitcnt vmcnt(0)')
    SN2 = SN + SN[NPRO:NEND] + ['end']; SN[:] = SN[:NEND]; stamp('end')
    k('s_lshl_b32 s97, s2, 2'); k(f's_add_u32 s97, s97, {s(sW)}'); k('s_lshl_b32 s97, s97, 8'); k(f's_add_u32 s97, s97, {STAMPS}')
    k(f'v_lshlrev_b32 v3, 2, {v(vLANE)}')
    k(f'buffer_store_dword {v(vSTMP)}, v3, {s(SWS,4)}, s97 offen')
k.label('L_exit')
k('s_endpgm')

k.label('L_att_retry')
k(f's_cmp_lg_u32 {s(sRETRY)}, 0')
k('s_cbranch_scc1 L_att_ok')
k(f's_mov_b32 {s(sRETRY)}, 1')
k('s_waitcnt vmcnt(0)')
k(f'v_mov_b32 {v(vMA)}, 0xff800000'); k(f'v_mov_b32 {v(vMB)}, 0xff800000')
k(f'v_mov_b32 {v(vKA)}, {v(vL16)}')
k('s_mov_b32 s94, 0')
k.label('L_mx')
k(f'ds_read_b128 {v(KB,4)}, {v(vKA)}')
k('s_add_u32 s94, s94, 1'); k('s_and_b32 s95, s94, 3'); k('s_cmp_eq_u32 s95, 0')
k('s_cselect_b32 s95, 4096, 0'); k('s_add_u32 s95, s95, 1024')
k('s_waitcnt lgkmcnt(0)')
k(mfma(S0, v(KB,4), v(QA,4), '0')); k(mfma(S1, v(KB,4), v(QB,4), '0'))
k(f'v_add_u32 {v(vKA)}, s95, {v(vKA)}')
emit(rowmax(vMA, S0, False)); emit(rowmax(vMB, S1, False))
k('s_cmp_lt_u32 s94, 64')
k('s_cbranch_scc1 L_mx')
k(f'v_mov_b32 {v(vKA)}, {v(vL16)}'); k(f'v_mov_b32 {v(vVA)}, {v(vVA0)}')
k(f'ds_read_b128 {v(KB,4)}, {v(vKA)}'); k(f'ds_read_b128 {v(KB+4,4)}, {v(vKA)} offset:1024')
k(f'ds_read_b128 {v(VLO,4)}, {v(vVA)}'); k(f'ds_read_b128 {v(VHI,4)}, {v(vVA)} offset:512')
for i in range(32): k(f'v_mov_b32 {v(OA+i)}, 0')
for i in range(8): k(f'v_mov_b32 {v(S1+8+i)}, 0')
for i in range(4): k(f'v_mov_b32 {v(VHI+4+i)}, 0')
cinit()
k('s_mov_b32 s94, 0')
k.settle(12)
k.label('L_rb')
for t in range(4):
    koff = (t+2)*1024 if t < 2 else 8192 + (t-2)*1024
    kadd = ('post', f'v_add_u32 {v(vKA)}, 0x2000, {v(vKA)}') if t == 3 else None
    emit(att_tile(t, False, False, koff, ((t+1) & 3)*1024, t == 3, kadd, {}))
k('s_add_u32 s94, s94, 1'); k('s_cmp_lt_u32 s94, 16')
k('s_cbranch_scc1 L_rb')
k.settle(16)
k('s_branch L_att_fin')
for c in COLD: c()

k.raw(f'''.section .rodata,"a"
.p2align 6
.amdhsa_kernel {NAME}_kernel
  .amdhsa_next_free_vgpr 512
  .amdhsa_next_free_sgpr 102
  .amdhsa_accum_offset 256
  .amdhsa_group_segment_fixed_size 0
  .amdhsa_kernarg_size 88
  .amdhsa_user_sgpr_count 2
  .amdhsa_user_sgpr_kernarg_segment_ptr 1
  .amdhsa_system_sgpr_workgroup_id_x 1
.end_amdhsa_kernel''')
out = [x for x in sys.argv[1:] if not x.startswith('--')]
open(out[0] if out else f'cdna_kernels/{NAME}.s', 'w').write(k.text())
if STAMP and out: open(out[0]+'.names','w').write(' '.join(SN2))
print('nops inserted:', k.nops_inserted, file=sys.stderr)
```
